```python
import torch

def _softmax(x, axis=-1):
    return torch.softmax(x, dim=axis)
def _gelu(x):
    return torch.nn.functional.gelu(x, approximate="tanh")
def _silu(x):
    return torch.nn.functional.silu(x)
def _sigmoid(x):
    return torch.sigmoid(x)
def _layernorm(x, axis=-1, eps=1e-5):
    m = x.mean(dim=axis, keepdim=True)
    v = x.var(dim=axis, keepdim=True, unbiased=False)
    return (x - m) / torch.sqrt(v + eps)
def _scatter_add(tgt, idx, src, axis=0):
    return tgt.clone().index_add_(axis, idx, src)
def _segment_sum(src, seg, n):
    out = torch.zeros((n,) + src.shape[1:], dtype=src.dtype)
    return out.index_add_(0, seg, src)
def _pad(x, pw):
    flat = tuple(v for pair in reversed(pw) for v in pair)
    return torch.nn.functional.pad(x, flat)

kernel_name = 'sequential_preLN__ssm_conv_s4__moe_arch_mod__prompt'

def setup_inputs():

    _w = (lambda a: (lambda t: t.to(torch.bfloat16) if t.is_floating_point() else t)(torch.as_tensor(a)))
    def _A_setup():
        B, L, D, N = 1, 2048, 640, 192
        A_re = -(lambda _x: torch.exp(torch.as_tensor(_x)))((lambda *s: torch.randn(*s, dtype=torch.bfloat16) * 6.4)(D, N))
        A_im = torch.pi * (lambda *s: torch.randn(*s, dtype=torch.bfloat16) * 0.05)(D, N)
        B_re = (lambda *s: torch.randn(*s, dtype=torch.bfloat16) * 0.05)(D, N)
        B_im = (lambda *s: torch.randn(*s, dtype=torch.bfloat16) * 0.05)(D, N)
        C_re = (lambda *s: torch.randn(*s, dtype=torch.bfloat16) * 0.05)(D, N)
        C_im = (lambda *s: torch.randn(*s, dtype=torch.bfloat16) * 0.05)(D, N)
        log_dt = (lambda *s: torch.randn(*s, dtype=torch.bfloat16) * 0.05)(D) * 0.5 - 4.0
        Dskip = (lambda *s: torch.randn(*s, dtype=torch.bfloat16) * 0.05)(D)
        return {
            "u": _w((lambda *s: torch.randn(*s, dtype=torch.bfloat16) * 0.05)(B, L, D)),
            "A_re": _w(A_re),
            "A_im": _w(A_im),
            "B_re": _w(B_re),
            "B_im": _w(B_im),
            "C_re": _w(C_re),
            "C_im": _w(C_im),
            "log_dt": _w(log_dt),
            "Dskip": _w(Dskip),
        }
    _A_in = _A_setup()

    def _B_setup():
        B, S, D, F, C = 1, 2048, 640, 1536, 1
        return {
            "x": _w((lambda *s: torch.randn(*s, dtype=torch.bfloat16) * 0.05)(B, S, D)),
            "w_r": _w((lambda *s: torch.randn(*s, dtype=torch.bfloat16) * 0.05)(D)),
            "w_gate": _w((lambda *s: torch.randn(*s, dtype=torch.bfloat16) * 0.05)(D, F)),
            "w_up": _w((lambda *s: torch.randn(*s, dtype=torch.bfloat16) * 0.05)(D, F)),
            "w_down": _w((lambda *s: torch.randn(*s, dtype=torch.bfloat16) * 0.05)(F, D)),
        }
    _B_in = _B_setup()

    return {
        "A_u": _A_in["u"],
        "A_A_re": _A_in["A_re"],
        "A_A_im": _A_in["A_im"],
        "A_B_re": _A_in["B_re"],
        "A_B_im": _A_in["B_im"],
        "A_C_re": _A_in["C_re"],
        "A_C_im": _A_in["C_im"],
        "A_log_dt": _A_in["log_dt"],
        "A_Dskip": _A_in["Dskip"],
        "B_x": _B_in["x"],
        "B_w_r": _B_in["w_r"],
        "B_w_gate": _B_in["w_gate"],
        "B_w_up": _B_in["w_up"],
        "B_w_down": _B_in["w_down"],
    }

def reference(A_u, A_A_re, A_A_im, A_B_re, A_B_im, A_C_re, A_C_im, A_log_dt, A_Dskip, B_x, B_w_r, B_w_gate, B_w_up, B_w_down):
    def _A_ref(u, A_re, A_im, B_re, B_im, C_re, C_im, log_dt, Dskip):
        Bsz, L, D = u.shape
        dt = torch.exp(log_dt)[:, None]
        A = A_re + 1j * A_im
        Bc = B_re + 1j * B_im
        Cc = C_re + 1j * C_im
        logdA = dt * A
        dB = dt * Bc
        l = (lambda x, dt: x.to(dt))(torch.arange(L), A_re.dtype)
        P = torch.exp(logdA[:, :, None] * l[None, None, :])
        K = torch.einsum("dn,dnl,dn->dl", Cc, P, dB).real
        L2 = 2 * L
        Kp = _pad(K, ((0, 0), (0, L)))
        up = (lambda x, *d: x.permute(*d))(u, 0, 2, 1)
        up = _pad(up, ((0, 0), (0, 0), (0, L)))
        Kf = (lambda x, axes=(-2,-1): torch.fft.rfft2(x.float(), dim=axes))(Kp[:, None, :], axes=(-2, -1))
        Uf = (lambda x, axes=(-2,-1): torch.fft.rfft2(x.float(), dim=axes))(up[:, :, None, :], axes=(-2, -1))
        Yf = Uf * Kf[None, :, :, :]
        y = (lambda x, s, axes=(-2,-1): torch.fft.irfft2(x, s=s, dim=axes).to(torch.bfloat16))(Yf, (1, L2), axes=(-2, -1))[:, :, 0, :L]
        y = (lambda x, *d: x.permute(*d))(y, 0, 2, 1) + u * Dskip[None, None, :]
        return y

    def _B_ref(x, w_r, w_gate, w_up, w_down):
        B, S, D = x.shape
        C = 1
        r = x @ w_r
        idx = torch.argsort(-r, axis=-1)[:, :C]
        idx_e = (lambda x, n, axis: torch.repeat_interleave(x, n, dim=axis))(idx.reshape(B, C, 1), D, axis=2)
        x_sel = (lambda x, i, axis: torch.take_along_dim(x, i, dim=axis))(x, idx_e, axis=1)
        g = _silu(x_sel @ w_gate)
        u = x_sel @ w_up
        y = (g * u) @ w_down
        r_sel = _sigmoid((lambda x, i, axis: torch.take_along_dim(x, i, dim=axis))(r, idx, axis=1))
        y = y * r_sel.reshape(B, C, 1)
        b_off = (torch.arange(B) * S).reshape(B, 1)
        flat_idx = (idx + b_off).reshape(B * C)
        zero = (x * 0.0).reshape(B * S, D)
        upd = _scatter_add(zero, flat_idx, y.reshape(B * C, D), axis=0)
        return x + upd.reshape(B, S, D)

    x = A_u
    h = x + _A_ref(_layernorm(x, axis=-1), A_A_re, A_A_im, A_B_re, A_B_im, A_C_re, A_C_im, A_log_dt, A_Dskip)
    h2 = h + _B_ref(_layernorm(h, axis=-1), B_w_r, B_w_gate, B_w_up, B_w_down)
    return h2
```

```python
import sys

UT_OFF = 0
UTS = 4352
KR_OFF = 0x300000
KRS = 5120
KS_OFF = 0x700000
YB_OFF = 0x800000
YBS = 10368
CK_OFF = 0xC00000
CH_OFF = 0xC10000
GU_OFF = 0xD00000
WS_SIZE = 0x10000000

class Asm:
    def __init__(self):
        self.lines = []
    def __call__(self, s):
        for l in s.strip("\n").split("\n"):
            self.lines.append(l)
    def text(self):
        return "\n".join(self.lines) + "\n"

def header(a, name):
    a(f".globl {name}\n.p2align 8\n.type {name},@function\n{name}:")

def desc(name, vgpr, sgpr=96, accum=None):
    if accum is None:
        accum = (vgpr + 3) // 4 * 4
    return f"""
.p2align 6
.amdhsa_kernel {name}
  .amdhsa_next_free_vgpr {vgpr}
  .amdhsa_next_free_sgpr {sgpr}
  .amdhsa_accum_offset {accum}
  .amdhsa_group_segment_fixed_size 0
  .amdhsa_kernarg_size 136
  .amdhsa_user_sgpr_count 2
  .amdhsa_user_sgpr_kernarg_segment_ptr 1
  .amdhsa_system_sgpr_workgroup_id_x 1
.end_amdhsa_kernel
"""

def srd(a, d, lo, size):
    a(f"""    s_mov_b32 s{d}, s{lo}
    s_mov_b32 s{d+1}, s{lo+1}
    s_mov_b32 s{d+2}, {size}
    s_mov_b32 s{d+3}, 0x00020000""")

DPP_STEPS = ["row_shr:1 row_mask:0xf bank_mask:0xf",
             "row_shr:2 row_mask:0xf bank_mask:0xf",
             "row_shr:4 row_mask:0xf bank_mask:0xf",
             "row_shr:8 row_mask:0xf bank_mask:0xf",
             "row_bcast:15 row_mask:0xa bank_mask:0xf",
             "row_bcast:31 row_mask:0xc bank_mask:0xf"]

def dpp_reduce(a, regs, op="v_add_f32"):
    n = len(regs)
    pad = max(0, 3 - n)
    a("    s_nop 1")
    for st in DPP_STEPS:
        for r in regs:
            a(f"    {op}_dpp v{r}, v{r}, v{r} {st}")
        if pad:
            a(f"    s_nop {pad-1}")

def round_bf16_pair(a, p, x0, x1):
    a(f"""    v_cvt_pk_bf16_f32 v{p}, v{x0}, v{x1}
    v_lshlrev_b32 v{x0}, 16, v{p}
    v_and_b32 v{x1}, 0xffff0000, v{p}""")

INV640 = "0x3acccccd"
EPS = "0x3727c5ac"
LOG2E = "0x3fb8aa3b"
INV2PI = "0x3e22f983"

def ln_stats(a, X, ntok, vs, vt, s_mean, s_mb, s_rs):
    for t in range(ntok):
        a(f"    v_add_f32 v{vs[t]}, v{X[t][0]}, v{X[t][1]}")
    for j in range(2, 10):
        for t in range(ntok):
            a(f"    v_add_f32 v{vs[t]}, v{vs[t]}, v{X[t][j]}")
    dpp_reduce(a, vs[:ntok])
    for t in range(ntok):
        a(f"    v_mul_f32 v{vs[t]}, {INV640}, v{vs[t]}")
    a("    s_nop 0")
    for t in range(ntok):
        a(f"    v_readlane_b32 s{s_mean[t]}, v{vs[t]}, 63")
    a("    s_nop 1")
    for j in range(10):
        for t in range(ntok):
            a(f"    v_subrev_f32 v{vt[t]+0}, s{s_mean[t]}, v{X[t][j]}") if False else None
    return

def gen():
    a = Asm()
    a("; @launch kernel=ln1_kgen_kernel grid=(768,1,1) block=(256,1,1) lds=16640")
    a("; @launch kernel=conv_kernel grid=(640,1,1) block=(256,1,1) lds=38912")
    a("; @launch kernel=ln2_kernel grid=(256,1,1) block=(256,1,1) lds=64")
    a("; @launch kernel=ffn1_kernel grid=(192,1,1) block=(256,1,1) lds=256")
    a("; @launch kernel=ffn2_kernel grid=(80,1,1) block=(256,1,1) lds=256")
    a('.amdgcn_target "amdgcn-amd-amdhsa--gfx950"\n.text')
    k1(a); k2(a); k3(a); k4(a); k5(a)
    a('.section .rodata,"a"')
    a(desc("ln1_kgen_kernel", 96))
    a(desc("conv_kernel", 96))
    a(desc("ln2_kernel", 80))
    a(desc("ffn1_kernel", 64))
    a(desc("ffn2_kernel", 64))
    return a.text()

def stats(a, X, vS, vD, sM, sMB, sRS):
    n = len(X)
    for t in range(n):
        a(f"    v_add_f32 v{vS[t]}, v{X[t][0]}, v{X[t][1]}")
    for j in range(2, 10):
        for t in range(n):
            a(f"    v_add_f32 v{vS[t]}, v{vS[t]}, v{X[t][j]}")
    dpp_reduce(a, vS)
    a("    s_nop 0")
    for t in range(n):
        a(f"    v_mul_f32 v{vS[t]}, {INV640}, v{vS[t]}")
    a("    s_nop 0")
    for t in range(n):
        a(f"    v_readlane_b32 s{sM[t]}, v{vS[t]}, 63")
    for t in range(n):
        a(f"    v_cvt_pk_bf16_f32 v{vS[t]}, v{vS[t]}, v{vS[t]}")
    for t in range(n):
        a(f"    v_lshlrev_b32 v{vS[t]}, 16, v{vS[t]}")
    a("    s_nop 0")
    for t in range(n):
        a(f"    v_readlane_b32 s{sMB[t]}, v{vS[t]}, 63")
    for t in range(n):
        a(f"    v_subrev_f32 v{vD[t]}, s{sM[t]}, v{X[t][0]}")
    for t in range(n):
        a(f"    v_mul_f32 v{vS[t]}, v{vD[t]}, v{vD[t]}")
    for j in range(1, 10):
        for t in range(n):
            a(f"    v_subrev_f32 v{vD[t]}, s{sM[t]}, v{X[t][j]}")
        for t in range(n):
            a(f"    v_fmac_f32 v{vS[t]}, v{vD[t]}, v{vD[t]}")
    dpp_reduce(a, vS)
    a("    s_nop 0")
    for t in range(n):
        a(f"    v_mul_f32 v{vS[t]}, {INV640}, v{vS[t]}")
    for t in range(n):
        a(f"    v_cvt_pk_bf16_f32 v{vS[t]}, v{vS[t]}, v{vS[t]}")
    for t in range(n):
        a(f"    v_lshlrev_b32 v{vS[t]}, 16, v{vS[t]}")
    for t in range(n):
        a(f"    v_add_f32 v{vS[t]}, {EPS}, v{vS[t]}")
    for t in range(n):
        a(f"    v_cvt_pk_bf16_f32 v{vS[t]}, v{vS[t]}, v{vS[t]}")
    for t in range(n):
        a(f"    v_lshlrev_b32 v{vS[t]}, 16, v{vS[t]}")
    for t in range(n):
        a(f"    v_sqrt_f32 v{vS[t]}, v{vS[t]}")
    a("    s_nop 0")
    for t in range(n):
        a(f"    v_cvt_pk_bf16_f32 v{vS[t]}, v{vS[t]}, v{vS[t]}")
    for t in range(n):
        a(f"    v_lshlrev_b32 v{vS[t]}, 16, v{vS[t]}")
    for t in range(n):
        a(f"    v_rcp_f32 v{vS[t]}, v{vS[t]}")
    a("    s_nop 0")
    for t in range(n):
        a(f"    v_readlane_b32 s{sRS[t]}, v{vS[t]}, 63")
    a("    s_nop 1")

def k1(a):
    header(a, "ln1_kgen_kernel")
    a("""    s_cmp_ge_u32 s2, 768
    s_cbranch_scc1 L_k1_done
    s_cmp_ge_u32 s2, 128
    s_cbranch_scc1 L_kgen""")
    a("""    s_load_dwordx2 s[4:5], s[0:1], 0        ; A_u
    s_load_dwordx2 s[6:7], s[0:1], 128      ; ws
    v_lshrrev_b32 v1, 6, v0
    v_and_b32 v2, 63, v0                    ; lane
    s_nop 0
    v_readfirstlane_b32 s3, v1
    s_waitcnt lgkmcnt(0)""")
    srd(a, 8, 4, 2621440)
    srd(a, 12, 6, WS_SIZE)
    a("""    s_lshl_b32 s16, s2, 4
    s_lshl_b32 s17, s3, 2
    s_add_u32 s16, s16, s17                 ; t0
    s_mul_i32 s17, s16, 1280
    s_add_u32 s18, s17, 2560
    v_lshlrev_b32 v3, 2, v2                 ; lane*4""")
    RAW = 4
    for t in range(4):
        for k in range(5):
            so = "s17" if t < 2 else "s18"
            a(f"    buffer_load_dword v{RAW+5*t+k}, v3, s[8:11], {so} offen offset:{(t&1)*1280+256*k}")
    X = [[24 + 10*t + j for j in range(10)] for t in range(4)]
    for t in range(4):
        a(f"    s_waitcnt vmcnt({15-5*t})")
        for k in range(5):
            a(f"    v_lshlrev_b32 v{X[t][2*k]}, 16, v{RAW+5*t+k}")
            a(f"    v_and_b32 v{X[t][2*k+1]}, 0xffff0000, v{RAW+5*t+k}")
    vS = [64, 65, 66, 67]; vD = [68, 69, 70, 71]
    sM = [20, 21, 22, 23]; sMB = [24, 25, 26, 27]; sRS = [28, 29, 30, 31]
    stats(a, X, vS, vD, sM, sMB, sRS)
    a(f"""    s_mov_b32 s32, {2*UTS}
    v_mul_lo_u32 v72, v2, s32               ; lane*2*UTS
    v_add_u32 v73, {UTS}, v72
    s_lshl_b32 s33, s16, 1
    s_add_u32 s33, s33, {UT_OFF+128}        ; + 2*t0""")
    for j in range(10):
        for tp in range(2):
            t0, t1 = 2*tp, 2*tp+1
            x0, x1 = X[t0][j], X[t1][j]
            a(f"    v_subrev_f32 v{x0}, s{sMB[t0]}, v{x0}")
            a(f"    v_subrev_f32 v{x1}, s{sMB[t1]}, v{x1}")
            round_bf16_pair(a, 74, x0, x1)
            a(f"    v_mul_f32 v{x0}, s{sRS[t0]}, v{x0}")
            a(f"    v_mul_f32 v{x1}, s{sRS[t1]}, v{x1}")
            round_bf16_pair(a, 74, x0, x1)
            a(f"    v_cvt_pk_f16_f32 v{4+2*j+tp}, v{x0}, v{x1}")
        k, hh = j // 2, j & 1
        if hh == 0:
            if k == 0:
                a("    s_mov_b32 s34, s33")
            else:
                a(f"    s_add_u32 s34, s34, {128*UTS}")
        a(f"    buffer_store_dwordx2 v[{4+2*j}:{5+2*j}], v{72+hh}, s[12:15], s34 offen")
    a("""    s_cmp_lg_u32 s16, 0
    s_cbranch_scc1 L_k1_done
    v_mov_b32 v76, 0
    v_mov_b32 v77, 0
    v_mov_b32 v78, 0
    v_mov_b32 v79, 0""")
    a(f"    s_mov_b32 s34, {UT_OFF+96}")
    for k in range(5):
        for hh in range(2):
            a(f"    buffer_store_dwordx4 v[76:79], v{72+hh}, s[12:15], s34 offen")
            a(f"    buffer_store_dwordx4 v[76:79], v{72+hh}, s[12:15], s34 offen offset:16")
        if k < 4:
            a(f"    s_add_u32 s34, s34, {128*UTS}")
    a("    s_branch L_k1_done")

    PRM = 0; PART = 4096; EW = 16384
    a("L_kgen:")
    a("""    s_sub_u32 s2, s2, 128                   ; d
    s_load_dwordx4 s[4:7], s[0:1], 8
    s_load_dwordx4 s[8:11], s[0:1], 24
    s_load_dwordx4 s[12:15], s[0:1], 40
    s_load_dwordx2 s[16:17], s[0:1], 56     ; log_dt
    s_load_dwordx2 s[18:19], s[0:1], 128    ; ws
    v_lshrrev_b32 v1, 6, v0
    v_and_b32 v2, 63, v0                    ; lane
    s_nop 0
    v_readfirstlane_b32 s3, v1
    v_min_u32 v3, 47, v2
    s_mul_i32 s20, s2, 384
    s_mul_i32 s21, s3, 96
    s_add_u32 s20, s20, s21
    v_lshlrev_b32 v3, 1, v3
    v_add_u32 v3, s20, v3
    s_lshl_b32 s21, s2, 1
    v_mov_b32 v4, s21
    s_waitcnt lgkmcnt(0)
    global_load_ushort v5, v3, s[4:5]
    global_load_ushort v6, v3, s[6:7]
    global_load_ushort v7, v3, s[8:9]
    global_load_ushort v8, v3, s[10:11]
    global_load_ushort v9, v3, s[12:13]
    global_load_ushort v10, v3, s[14:15]
    global_load_ushort v11, v4, s[16:17]""")
    srd(a, 24, 18, WS_SIZE)
    a("""    v_and_b32 v12, 15, v2                   ; rho
    v_lshrrev_b32 v13, 4, v2                ; g
    v_cvt_f32_u32 v14, v12
    v_lshlrev_b32 v15, 4, v12
    v_cvt_f32_u32 v17, v15
    ; lf1
    v_lshlrev_b32 v18, 1, v12
    v_add_u32 v18, 256, v18                 ; 256+2rho
    v_bfe_u32 v19, v12, 2, 1
    v_lshlrev_b32 v19, 8, v19
    v_and_b32 v20, 3, v12
    v_lshlrev_b32 v20, 2, v20
    v_add3_u32 v19, v19, v20, 64
    v_add_u32 v19, 448, v19
    v_cmp_gt_u32 vcc, 8, v12
    ; lf2
    v_lshrrev_b32 v20, 1, v12
    v_lshlrev_b32 v20, 8, v20
    v_and_b32 v21, 1, v12
    v_lshlrev_b32 v21, 3, v21
    v_add_u32 v20, v20, v21
    v_add_u32 v20, 1024, v20                ; 1024+256*(rho>>1)+8*(rho&1)
    v_cndmask_b32 v18, v19, v18, vcc
    v_cndmask_b32 v20, 0, v20, vcc
    v_cmp_eq_u32 vcc, 8, v12
    v_mov_b32 v21, 2048
    v_cvt_f32_u32 v15, v18                  ; lf1
    v_cndmask_b32 v20, v20, v21, vcc
    v_cvt_f32_u32 v16, v20                  ; lf2
    s_lshl_b32 s22, s3, 10
    v_lshlrev_b32 v22, 6, v13
    v_add_u32 v22, s22, v22
    v_lshlrev_b32 v23, 4, v2
    v_add_u32 v23, s22, v23
    s_waitcnt vmcnt(0)
    v_lshlrev_b32 v5, 16, v5
    v_lshlrev_b32 v6, 16, v6
    v_lshlrev_b32 v7, 16, v7
    v_lshlrev_b32 v8, 16, v8
    v_lshlrev_b32 v9, 16, v9
    v_lshlrev_b32 v10, 16, v10
    v_lshlrev_b32 v11, 16, v11""")
    a(f"""    v_mul_f32 v11, {LOG2E}, v11
    v_exp_f32 v11, v11
    s_nop 0
    v_cvt_pk_bf16_f32 v11, v11, v11
    v_lshlrev_b32 v11, 16, v11
    v_mul_f32 v24, v11, v5                  ; ar
    v_mul_f32 v25, v11, v6                  ; ai
    v_mul_f32 v24, {LOG2E}, v24             ; ar2
    v_mul_f32 v25, {INV2PI}, v25            ; ai2
    v_mul_f32 v7, v11, v7                   ; dBr
    v_mul_f32 v8, v11, v8                   ; dBi
    v_mul_f32 v26, v10, v8                  ; Ci*dBi
    v_mul_f32 v27, v10, v7                  ; Ci*dBr
    v_fma_f32 v26, v9, v7, -v26             ; cr
    v_fma_f32 v27, v9, v8, v27              ; ci
    v_max_f32 v28, abs(v26), abs(v27)""")
    dpp_reduce(a, [28], op="v_max_f32")
    a("""    s_nop 0
    v_frexp_exp_i32_f32 v28, v28
    s_nop 0
    v_readlane_b32 s23, v28, 63             ; e
    s_nop 3
    s_sub_u32 s28, 127, s23
    s_lshl_b32 s28, s28, 23                 ; 2^-e
    s_add_u32 s29, 127, s23
    s_lshl_b32 s29, s29, 23                 ; 2^e
    v_mul_f32 v26, s28, v26
    v_mul_f32 v27, s28, v27
    v_mov_b32 v28, s23""")
    a(f"""    s_lshl_b32 s30, s3, 2
    s_add_u32 s30, s30, {EW}
    v_mov_b32 v29, s30
    ds_write_b128 v23, v[24:27]
    ds_write_b32 v29, v28
    v_mov_b32 v80, 0
    v_mov_b32 v81, 0
    v_mov_b32 v82, 0
    v_mov_b32 v83, 0
    v_mov_b32 v84, 0
    v_mov_b32 v85, 0
    v_mov_b32 v86, 0
    v_mov_b32 v87, 0
    v_mov_b32 v88, 0
    v_mov_b32 v89, 0
    v_mov_b32 v90, 0
    v_mov_b32 v91, 0
    s_waitcnt lgkmcnt(0)""")
    LF = [14, 15, 16, 17]
    for q in range(3):
        for i in range(4):
            a(f"    ds_read_b128 v[{32+4*i}:{35+4*i}], v22 offset:{PRM + 256*q + 16*i}")
        for i in range(4):
            a(f"    s_waitcnt lgkmcnt({3-i})")
            P = 32 + 4*i
            for T in range(4):
                a(f"    v_mul_f32 v{64+T}, v{P}, v{LF[T]}")
                a(f"    v_mul_f32 v{68+T}, v{P+1}, v{LF[T]}")
            for T in range(4):
                a(f"    v_exp_f32 v{64+T}, v{64+T}")
                a(f"    v_fract_f32 v{68+T}, v{68+T}")
            for T in range(4):
                a(f"    v_cos_f32 v{72+T}, v{68+T}")
                a(f"    v_sin_f32 v{76+T}, v{68+T}")
            for T in range(3):
                a(f"    v_fma_mixlo_f16 v{48+4*T+i}, v{64+T}, v{72+T}, 0")
                a(f"    v_fma_mixhi_f16 v{48+4*T+i}, -v{64+T}, v{76+T}, 0")
            a(f"""    v_mul_f32 v75, v67, v75
    v_mul_f32 v79, v67, v79
    v_mul_f32 v67, v{P+3}, v79              ; ci*ei
    v_mul_f32 v71, v{P+3}, v75              ; ci*er
    v_fma_mixlo_f16 v{60+i}, v{P+2}, v75, -v67
    v_fma_mixhi_f16 v{60+i}, v{P+2}, v79, v71""")
        a("    s_nop 1")
        for T in range(3):
            a(f"    v_mfma_f32_16x16x32_f16 v[{80+4*T}:{83+4*T}], v[{48+4*T}:{51+4*T}], v[60:63], v[{80+4*T}:{83+4*T}]")
    a(f"""    s_mul_i32 s31, s3, 3072
    s_add_u32 s31, s31, {PART}
    ; t0: 4*(16rho+4g)
    v_lshlrev_b32 v32, 6, v12
    v_lshl_add_u32 v32, v13, 4, v32
    v_add_u32 v32, s31, v32
    v_lshlrev_b32 v33, 5, v12
    v_lshl_add_u32 v33, v13, 4, v33
    v_add_u32 v33, 1024, v33
    v_lshlrev_b32 v34, 4, v12
    v_lshl_add_u32 v34, v13, 8, v34
    v_add_u32 v34, 1024, v34                ; 4*(384-128) = 1024
    v_cmp_gt_u32 vcc, 2, v13
    v_lshlrev_b32 v35, 3, v12
    v_lshl_add_u32 v35, v13, 8, v35
    v_add_u32 v35, 2048, v35
    v_lshlrev_b32 v36, 3, v2
    v_add_u32 v36, 2304, v36                ; 4*640 - 8*32 = 2304
    v_cndmask_b32 v33, v34, v33, vcc
    v_cndmask_b32 v35, v36, v35, vcc
    v_add_u32 v33, s31, v33
    v_add_u32 v35, s31, v35""")
    for r in range(80, 92):
        a(f"    v_mul_f32 v{r}, s29, v{r}")
    a(f"""    ds_write_b128 v32, v[80:83]
    ds_write_b128 v33, v[84:87]
    ds_write_b64 v35, v[88:89]
    ds_write_b64 v35, v[90:91] offset:128
    v_lshlrev_b32 v37, 3, v0
    v_sub_u32 v37, 2047, v37                ; x0 = 2047-8tid
    v_cmp_le_u32 vcc, 240, v0""")
    for i in range(8):
        a(f"    v_subrev_u32 v{40+i}, {i}, v37")
    for i in range(8):
        a(f"    v_cvt_f32_u32 v{48+i}, v{40+i}")
    for i in range(0, 8, 2):
        a(f"    v_cvt_pk_bf16_f32 v{56+i//2}, v{48+i}, v{49+i}")
    for i in range(0, 8, 2):
        a(f"    v_and_b32 v{48+i}, 0xffff, v{56+i//2}")
        a(f"    v_lshrrev_b32 v{49+i}, 16, v{56+i//2}")
    for i in range(8):
        a(f"    v_subrev_u32 v{48+i}, 17024, v{48+i}")
    for i in range(8):
        a(f"    v_cndmask_b32 v{48+i}, v{48+i}, v{40+i}, vcc")
    for i in range(8):
        a(f"    v_lshlrev_b32 v{48+i}, 2, v{48+i}")
    a(f"""    v_mov_b32 v38, {EW}
    s_waitcnt lgkmcnt(0)
    s_barrier
    ds_read_b128 v[60:63], v38""")
    for i in range(8):
        for w in range(4):
            a(f"    ds_read_b32 v{64+4*(i&3)+w}, v{48+i} offset:{PART+3072*w}")
        if i == 3 or i == 7:
            a("    s_waitcnt lgkmcnt(0)")
            for ii in range(i-3, i+1):
                b = 64 + 4*(ii & 3)
                a(f"    v_add_f32 v{b}, v{b}, v{b+1}")
                a(f"    v_add_f32 v{b+2}, v{b+2}, v{b+3}")
                a(f"    v_add_f32 v{40+ii}, v{b}, v{b+2}")
    a(f"""    v_max_i32 v60, v60, v61
    v_max_i32 v62, v62, v63
    v_max_i32 v60, v60, v62
    v_max_i32 v60, -100, v60
    v_min_i32 v60, 100, v60                 ; E
    v_sub_u32 v61, 133, v60
    v_lshlrev_b32 v61, 23, v61              ; 2^(6-E)
    v_add_u32 v62, 121, v60
    v_lshlrev_b32 v62, 23, v62              ; 2^(E-6)""")
    for i in range(8):
        a(f"    v_mul_f32 v{40+i}, v61, v{40+i}")
    for i in range(0, 8, 2):
        a(f"    v_cvt_pk_f16_f32 v{48+i//2}, v{40+i}, v{41+i}")
    a(f"""    s_mul_i32 s31, s2, {KRS}
    s_add_u32 s31, s31, {KR_OFF}
    v_lshlrev_b32 v52, 4, v0
    buffer_store_dwordx4 v[48:51], v52, s[24:27], s31 offen
    v_mov_b32 v56, 0
    v_mov_b32 v57, 0
    v_mov_b32 v58, 0
    v_mov_b32 v59, 0
    s_add_u32 s31, s31, 4096
    s_lshl_b32 s30, s2, 2
    s_add_u32 s30, s30, {KS_OFF}
    v_mov_b32 v53, 0
    v_cmp_gt_u32 vcc, 32, v0
    s_and_saveexec_b64 s[32:33], vcc
    s_cbranch_execz L_k1_done
    buffer_store_dwordx4 v[56:59], v52, s[24:27], s31 offen
    buffer_store_dword v62, v53, s[24:27], s30 offen
L_k1_done:
    s_endpgm""")

def k2(a):
    KRB = 33792
    header(a, "conv_kernel")
    a("""    s_cmp_ge_u32 s2, 640
    s_cbranch_scc1 L_k2_done
    s_load_dwordx2 s[4:5], s[0:1], 128      ; ws
    s_load_dwordx2 s[6:7], s[0:1], 64       ; Dskip
    v_lshrrev_b32 v1, 6, v0
    v_and_b32 v2, 63, v0                    ; lane
    s_nop 0
    v_readfirstlane_b32 s3, v1
    s_lshl_b32 s16, s2, 1
    s_and_b32 s16, s16, 0xfffffffc
    s_lshl_b32 s17, s2, 2
    s_waitcnt lgkmcnt(0)
    s_load_dword s18, s[6:7], s16""")
    a(f"    s_add_u32 s17, s17, {KS_OFF}")
    a("    s_load_dword s19, s[4:5], s17           ; Kinv")
    srd(a, 8, 4, WS_SIZE)
    a(f"""    s_mul_i32 s20, s2, {UTS}
    s_add_u32 s20, s20, {UT_OFF+96}
    s_mul_i32 s21, s2, {KRS}
    s_add_u32 s21, s21, {KR_OFF}
    v_lshlrev_b32 v3, 4, v2                 ; 16*lane
    s_mov_b32 s23, 16132
    s_movk_i32 s24, 4158""")
    a("    s_lshl_b32 s22, s3, 10                  ; 1024*i")
    for it in range(9):
        if it == 8:
            a("    s_cmp_lg_u32 s3, 0\n    s_cbranch_scc1 L_k2_skip9")
        a(f"""    v_add_u32 v4, s22, v3                   ; P
    v_lshrrev_b32 v5, 4, v4
    v_mul_u32_u24 v5, s23, v5
    v_lshrrev_b32 v5, 22, v5                ; j
    v_mul_u32_u24 v5, s24, v5
    v_sub_u32 v4, v4, v5
    s_mov_b32 m0, s22
    s_nop 0
    buffer_load_dwordx4 v4, s[8:11], s20 offen lds""")
        if it < 8:
            a("    s_add_u32 s22, s22, 4096")
    a("L_k2_skip9:")
    a(f"""    s_lshl_b32 s22, s3, 10
    s_add_u32 s25, s22, s21
    s_add_u32 s22, s22, {KRB}
    s_mov_b32 m0, s22
    s_nop 0
    buffer_load_dwordx4 v3, s[8:11], s25 offen lds
    s_cmp_lg_u32 s3, 1
    s_cbranch_scc1 L_k2_skipkr
    s_add_u32 s25, s21, 4096
    s_mov_b32 m0, {KRB+4096}
    s_nop 0
    buffer_load_dwordx4 v3, s[8:11], s25 offen lds
L_k2_skipkr:""")
    a(f"""    v_and_b32 v4, 15, v2                    ; b / a'
    v_lshrrev_b32 v5, 4, v2                 ; g
    v_add_u32 v6, 1, v4
    v_and_b32 v7, 7, v6
    v_mul_u32_u24 v7, 4160, v7
    v_lshrrev_b32 v6, 3, v6
    v_add_u32 v6, v6, v5
    v_lshl_add_u32 v7, v6, 4, v7
    s_lshl_b32 s22, s3, 7
    v_add_u32 v7, s22, v7                   ; A base
    v_lshlrev_b32 v8, 5, v4
    v_lshlrev_b32 v9, 4, v5
    v_sub_u32 v8, v9, v8
    s_add_u32 s22, s22, {KRB}
    v_add_u32 v8, s22, v8                   ; B base
    v_lshlrev_b32 v9, 4, v0""")
    ACC = 16
    AF = 48
    BF = 80
    for r in range(32):
        a(f"    v_mov_b32 v{ACC+r}, 0")
    a("""    s_waitcnt vmcnt(0) lgkmcnt(0)
    s_barrier
    ds_read_b128 v[88:91], v9 offset:32""")
    for res in range(2):
        for q in range(8):
            a(f"    ds_read_b128 v[{AF+4*q}:{AF+4*q+3}], v7 offset:{512*q+64*res}")
        a(f"    ds_read_b128 v[{BF}:{BF+3}], v8 offset:{4064+64*res}")
        for v in range(8):
            cur = BF + 4*(v & 1); nxt = BF + 4*((v+1) & 1)
            if v < 7:
                a(f"    ds_read_b128 v[{nxt}:{nxt+3}], v8 offset:{4064-512*(v+1)+64*res}")
                a("    s_waitcnt lgkmcnt(1)")
            else:
                a("    s_waitcnt lgkmcnt(0)")
            for q in range(8 - v):
                t = q + v
                a(f"    v_mfma_f32_16x16x32_f16 v[{ACC+4*t}:{ACC+4*t+3}], v[{AF+4*q}:{AF+4*q+3}], v[{cur}:{cur+3}], v[{ACC+4*t}:{ACC+4*t+3}]")
    a(f"""    s_lshl_b32 s22, s3, 13
    v_lshlrev_b32 v10, 6, v4
    v_lshl_add_u32 v10, v5, 4, v10
    v_add_u32 v10, s22, v10
    v_lshlrev_b32 v11, 5, v0
    s_nop 4
    s_barrier""")
    for t in range(8):
        a(f"    ds_write_b128 v10, v[{ACC+4*t}:{ACC+4*t+3}] offset:{1024*t}")
    a("""    s_waitcnt lgkmcnt(0)
    s_barrier""")
    for w in range(4):
        for hf in range(2):
            a(f"    ds_read_b128 v[{ACC+8*w+4*hf}:{ACC+8*w+4*hf+3}], v11 offset:{8192*w+16*hf}")
    a("""    s_bitcmp1_b32 s2, 0
    s_cbranch_scc1 L_k2_odd
    s_lshl_b32 s18, s18, 16
L_k2_odd:
    s_and_b32 s18, s18, 0xffff0000""")
    for i in range(4):
        a(f"    v_cvt_f32_f16 v{48+2*i}, v{88+i}")
        a(f"    v_cvt_f32_f16_sdwa v{49+2*i}, v{88+i} dst_sel:DWORD dst_unused:UNUSED_PAD src0_sel:WORD_1")
    for i in range(8):
        a(f"    v_mul_f32 v{48+i}, s18, v{48+i}")
    for i in range(0, 8, 2):
        round_bf16_pair(a, 56, 48+i, 49+i)
    a("    s_waitcnt lgkmcnt(0)")
    for i in range(8):
        a(f"    v_add_f32 v{ACC+i}, v{ACC+i}, v{ACC+8+i}")
        a(f"    v_add_f32 v{ACC+16+i}, v{ACC+16+i}, v{ACC+24+i}")
    for i in range(8):
        a(f"    v_add_f32 v{ACC+i}, v{ACC+i}, v{ACC+16+i}")
    for i in range(8):
        a(f"    v_mul_f32 v{ACC+i}, s19, v{ACC+i}")
    for i in range(0, 8, 2):
        round_bf16_pair(a, 56, ACC+i, ACC+i+1)
    for i in range(8):
        a(f"    v_add_f32 v{ACC+i}, v{ACC+i}, v{48+i}")
    for i in range(0, 8, 2):
        a(f"    v_cvt_pk_bf16_f32 v{60+i//2}, v{ACC+i}, v{ACC+i+1}")
    a(f"""    s_mov_b32 s22, {YBS}
    v_mul_lo_u32 v12, v0, s22
    s_lshl_b32 s23, s2, 4
    s_add_u32 s23, s23, {YB_OFF}
    buffer_store_dwordx4 v[60:63], v12, s[8:11], s23 offen
L_k2_done:
    s_endpgm""")

def k3(a):
    header(a, "ln2_kernel")
    a("""    s_cmp_ge_u32 s2, 256
    s_cbranch_scc1 L_k3_done
    s_load_dwordx2 s[4:5], s[0:1], 0        ; A_u
    s_load_dwordx2 s[6:7], s[0:1], 128      ; ws
    s_load_dwordx2 s[36:37], s[0:1], 80     ; w_r
    s_load_dwordx2 s[38:39], s[0:1], 112    ; out
    v_lshrrev_b32 v1, 6, v0
    v_and_b32 v2, 63, v0                    ; lane
    s_nop 0
    v_readfirstlane_b32 s3, v1
    s_waitcnt lgkmcnt(0)""")
    srd(a, 8, 4, 2621440)
    srd(a, 12, 6, WS_SIZE)
    srd(a, 40, 36, 1280)
    srd(a, 44, 38, 2621440)
    a(f"""    s_lshl_b32 s16, s2, 3
    s_lshl_b32 s17, s3, 1
    s_add_u32 s16, s16, s17                 ; t0
    s_mul_i32 s17, s16, 1280
    v_lshlrev_b32 v3, 2, v2                 ; lane*4
    s_mul_i32 s18, s2, {YBS}
    s_add_u32 s18, s18, {YB_OFF}
    s_lshl_b32 s19, s3, 2
    s_add_u32 s18, s18, s19
    s_add_u32 s19, s18, 4096
    s_add_u32 s34, s18, 8192
    v_lshlrev_b32 v4, 5, v2                 ; lane*32""")
    for t in range(2):
        for k in range(5):
            a(f"    buffer_load_dword v{6+5*t+k}, v3, s[8:11], s17 offen offset:{t*1280+256*k}")
    for k in range(5):
        for hh in range(2):
            so = ["s18", "s18", "s19", "s19", "s34"][k]
            off = (k & 1) * 2048 + 16 * hh
            a(f"    buffer_load_dword v{16+2*k+hh}, v4, s[12:15], {so} offen offset:{off}")
    for k in range(5):
        a(f"    buffer_load_dword v{26+k}, v3, s[40:43], 0 offen offset:{256*k}")
    H = [[32 + 10*t + j for j in range(10)] for t in range(2)]
    a("    s_waitcnt vmcnt(5)")
    for k in range(5):
        for hh in range(2):
            j = 2*k + hh
            a(f"    v_lshlrev_b32 v52, 16, v{16+j}")
            a(f"    v_and_b32 v53, 0xffff0000, v{16+j}")
            for t in range(2):
                if hh == 0:
                    a(f"    v_lshlrev_b32 v{H[t][j]}, 16, v{6+5*t+k}")
                else:
                    a(f"    v_and_b32 v{H[t][j]}, 0xffff0000, v{6+5*t+k}")
            a(f"    v_add_f32 v{H[0][j]}, v{H[0][j]}, v52")
            a(f"    v_add_f32 v{H[1][j]}, v{H[1][j]}, v53")
            round_bf16_pair(a, 54, H[0][j], H[1][j])
    vS = [52, 53]; vD = [54, 55]
    sM = [20, 21]; sMB = [24, 25]; sRS = [28, 29]
    stats(a, H, vS, vD, sM, sMB, sRS)
    Lr = [[56 + 10*t + j for j in range(10)] for t in range(2)]
    a("    s_waitcnt vmcnt(0)")
    for j in range(10):
        k, hh = j // 2, j & 1
        a(f"    v_subrev_f32 v{Lr[0][j]}, s{sMB[0]}, v{H[0][j]}")
        a(f"    v_subrev_f32 v{Lr[1][j]}, s{sMB[1]}, v{H[1][j]}")
        round_bf16_pair(a, 54, Lr[0][j], Lr[1][j])
        a(f"    v_mul_f32 v{Lr[0][j]}, s{sRS[0]}, v{Lr[0][j]}")
        a(f"    v_mul_f32 v{Lr[1][j]}, s{sRS[1]}, v{Lr[1][j]}")
        round_bf16_pair(a, 54, Lr[0][j], Lr[1][j])
        if hh == 0:
            a(f"    v_lshlrev_b32 v55, 16, v{26+k}")
        else:
            a(f"    v_and_b32 v55, 0xffff0000, v{26+k}")
        if j == 0:
            a(f"    v_mul_f32 v52, v55, v{Lr[0][j]}")
            a(f"    v_mul_f32 v53, v55, v{Lr[1][j]}")
        else:
            a(f"    v_fmac_f32 v52, v55, v{Lr[0][j]}")
            a(f"    v_fmac_f32 v53, v55, v{Lr[1][j]}")
    for t in range(2):
        for k in range(5):
            a(f"    v_add_f32 v54, v{H[t][2*k]}, v{Lr[t][2*k]}")
            a(f"    v_add_f32 v55, v{H[t][2*k+1]}, v{Lr[t][2*k+1]}")
            a(f"    v_cvt_pk_bf16_f32 v{6+5*t+k}, v54, v55")
            a(f"    buffer_store_dword v{6+5*t+k}, v3, s[44:47], s17 offen offset:{t*1280+256*k}")
    dpp_reduce(a, [52, 53])
    a("""    s_nop 0
    v_cvt_pk_bf16_f32 v52, v52, v53
    s_nop 0
    v_readlane_b32 s20, v52, 63
    s_nop 3
    s_and_b32 s21, s20, 0xffff
    s_lshr_b32 s22, s20, 16
    s_xor_b32 s23, s21, 0xffff
    s_or_b32 s24, s21, 0x8000
    s_bitcmp1_b32 s21, 15
    s_cselect_b32 s21, s23, s24
    s_xor_b32 s23, s22, 0xffff
    s_or_b32 s24, s22, 0x8000
    s_bitcmp1_b32 s22, 15
    s_cselect_b32 s22, s23, s24
    s_lshl_b32 s21, s21, 16
    s_lshl_b32 s22, s22, 16
    s_sub_u32 s23, 0xffff, s16
    s_or_b32 s21, s21, s23
    s_sub_u32 s23, s23, 1
    s_or_b32 s22, s22, s23
    s_max_u32 s23, s21, s22
    v_mov_b32 v52, s23
    s_lshl_b32 s24, s3, 2
    v_mov_b32 v53, s24
    ds_write_b32 v53, v52
    v_mov_b32 v53, 0
    s_waitcnt lgkmcnt(0)
    s_barrier
    ds_read_b128 v[76:79], v53
    s_waitcnt lgkmcnt(0)
    v_max_u32 v76, v76, v77
    v_max_u32 v78, v78, v79
    v_max_u32 v76, v76, v78
    s_nop 0
    v_readfirstlane_b32 s24, v76
    s_nop 3
    s_cmp_lg_u32 s24, s23
    s_cbranch_scc1 L_k3_done""")
    a(f"""    s_lshl_b32 s25, s2, 2
    s_add_u32 s25, s25, {CK_OFF}
    buffer_store_dword v52, v53, s[12:15], s25 offen
    s_mul_i32 s25, s2, 2560
    s_add_u32 s25, s25, {CH_OFF}
    s_cmp_eq_u32 s23, s21
    s_cbranch_scc0 L_k3_tok1""")
    for t in range(2):
        if t == 1:
            a("L_k3_tok1:")
        for k in range(5):
            a(f"    v_cvt_pk_bf16_f32 v{16+k}, v{H[t][2*k]}, v{H[t][2*k+1]}")
            a(f"    v_cvt_pk_bf16_f32 v{21+k}, v{Lr[t][2*k]}, v{Lr[t][2*k+1]}")
        for k in range(5):
            a(f"    buffer_store_dword v{16+k}, v3, s[12:15], s25 offen offset:{256*k}")
            a(f"    buffer_store_dword v{21+k}, v3, s[12:15], s25 offen offset:{1280+256*k}")
        if t == 0:
            a("    s_branch L_k3_done")
    a("""L_k3_done:
    s_endpgm""")

def load_key(a, vtmp, s_key):
    a(f"""    v_lshlrev_b32 v{vtmp+4}, 4, v2
    s_mov_b32 s{s_key}, {CK_OFF}
    buffer_load_dwordx4 v[{vtmp}:{vtmp+3}], v{vtmp+4}, s[12:15], s{s_key} offen""")

def reduce_key(a, vtmp, s_key):
    a(f"""    v_max_u32 v{vtmp}, v{vtmp}, v{vtmp+1}
    v_max_u32 v{vtmp+2}, v{vtmp+2}, v{vtmp+3}
    v_max_u32 v{vtmp}, v{vtmp}, v{vtmp+2}""")
    dpp_reduce(a, [vtmp], op="v_max_u32")
    a(f"""    s_nop 0
    v_readlane_b32 s{s_key}, v{vtmp}, 63
    s_nop 3""")

def k4(a):
    header(a, "ffn1_kernel")
    a("""    s_cmp_ge_u32 s2, 192
    s_cbranch_scc1 L_k4_done
    s_load_dwordx4 s[4:7], s[0:1], 88
    s_load_dwordx2 s[16:17], s[0:1], 128    ; ws
    v_lshrrev_b32 v1, 6, v0
    v_and_b32 v2, 63, v0                    ; lane
    s_nop 0
    v_readfirstlane_b32 s3, v1
    s_and_b32 s18, s2, 7
    s_mul_i32 s18, s18, 24
    s_lshr_b32 s19, s2, 3
    s_add_u32 s18, s18, s19                 ; slice
    s_waitcnt lgkmcnt(0)
    s_cmp_ge_u32 s3, 2
    s_cselect_b32 s4, s6, s4
    s_cselect_b32 s5, s7, s5""")
    srd(a, 8, 4, 1966080)
    srd(a, 12, 16, WS_SIZE)
    load_key(a, 56, 20)
    a("""    v_and_b32 v3, 127, v0                   ; r0
    s_movk_i32 s21, 3072
    v_mul_lo_u32 v4, v3, s21
    s_lshl_b32 s22, s18, 4""")
    for k in range(5):
        a(f"    buffer_load_dwordx4 v[{8+4*k}:{11+4*k}], v4, s[8:11], s22 offen")
        if k < 4:
            a(f"    s_add_u32 s22, s22, {128*3072}")
    a("    s_waitcnt vmcnt(5)")
    reduce_key(a, 56, 20)
    a(f"""    s_and_b32 s21, s20, 0xffff
    s_sub_u32 s21, 0xffff, s21              ; token
    s_lshr_b32 s21, s21, 3                  ; slot
    s_mul_i32 s21, s21, 2560
    s_add_u32 s21, s21, {CH_OFF+1280}
    v_lshlrev_b32 v5, 1, v3""")
    for k in range(5):
        a(f"    buffer_load_ushort v{28+k}, v5, s[12:15], s21 offen offset:{256*k}")
    a("    s_waitcnt vmcnt(0)")
    for k in range(5):
        a(f"    v_lshlrev_b32 v{28+k}, 16, v{28+k}")
    for k in range(5):
        for p in range(4):
            a(f"    v_lshlrev_b32 v44, 16, v{8+4*k+p}")
            a(f"    v_and_b32 v45, 0xffff0000, v{8+4*k+p}")
            if k == 0:
                a(f"    v_mul_f32 v{36+2*p}, v{28+k}, v44")
                a(f"    v_mul_f32 v{37+2*p}, v{28+k}, v45")
            else:
                a(f"    v_fmac_f32 v{36+2*p}, v{28+k}, v44")
                a(f"    v_fmac_f32 v{37+2*p}, v{28+k}, v45")
    dpp_reduce(a, list(range(36, 44)))
    a("""    s_lshl_b32 s22, s3, 5
    v_mov_b32 v46, s22
    v_cmp_eq_u32 vcc, 63, v2
    s_and_saveexec_b64 s[24:25], vcc
    ds_write_b128 v46, v[36:39]
    ds_write_b128 v46, v[40:43] offset:16
    s_mov_b64 exec, s[24:25]
    s_waitcnt lgkmcnt(0)
    s_barrier
    v_cmp_gt_u32 vcc, 8, v0
    s_and_saveexec_b64 s[24:25], vcc
    s_cbranch_execz L_k4_done
    v_lshlrev_b32 v46, 2, v0
    ds_read_b32 v47, v46
    ds_read_b32 v48, v46 offset:32
    ds_read_b32 v49, v46 offset:64
    ds_read_b32 v50, v46 offset:96
    s_waitcnt lgkmcnt(0)
    v_add_f32 v47, v47, v48                 ; gate
    v_add_f32 v49, v49, v50                 ; up""")
    round_bf16_pair(a, 51, 47, 49)
    a(f"""    v_mul_f32 v52, 0xbfb8aa3b, v47
    v_exp_f32 v52, v52
    s_nop 0
    v_add_f32 v52, 1.0, v52
    v_rcp_f32 v52, v52
    s_nop 0
    v_mul_f32 v47, v47, v52                 ; silu
    v_cvt_pk_bf16_f32 v47, v47, v47
    v_lshlrev_b32 v47, 16, v47
    v_mul_f32 v47, v47, v49
    v_cvt_pk_bf16_f32 v47, v47, v47
    v_lshlrev_b32 v47, 16, v47
    s_lshl_b32 s22, s18, 5
    s_add_u32 s22, s22, {GU_OFF}
    buffer_store_dword v47, v46, s[12:15], s22 offen
L_k4_done:
    s_endpgm""")

def k5(a):
    header(a, "ffn2_kernel")
    a("""    s_cmp_ge_u32 s2, 80
    s_cbranch_scc1 L_k5_done
    s_load_dwordx2 s[4:5], s[0:1], 104      ; w_down
    s_load_dwordx2 s[16:17], s[0:1], 128    ; ws
    s_load_dwordx2 s[38:39], s[0:1], 112    ; out
    v_lshrrev_b32 v1, 6, v0
    v_and_b32 v2, 63, v0                    ; lane
    s_nop 0
    v_readfirstlane_b32 s3, v1
    s_and_b32 s18, s2, 7
    s_mul_i32 s18, s18, 10
    s_lshr_b32 s19, s2, 3
    s_add_u32 s18, s18, s19                 ; slice
    s_waitcnt lgkmcnt(0)""")
    srd(a, 8, 4, 1966080)
    srd(a, 12, 16, WS_SIZE)
    srd(a, 44, 38, 2621440)
    load_key(a, 56, 20)
    a(f"""    s_movk_i32 s21, 1280
    v_mul_lo_u32 v4, v0, s21
    s_lshl_b32 s22, s18, 4
    v_lshlrev_b32 v5, 2, v0
    s_mov_b32 s23, {GU_OFF}""")
    for k in range(6):
        a(f"    buffer_load_dwordx4 v[{8+4*k}:{11+4*k}], v4, s[8:11], s22 offen")
        if k < 5:
            a(f"    s_add_u32 s22, s22, {256*1280}")
    for k in range(6):
        if k < 4:
            a(f"    buffer_load_dword v{32+k}, v5, s[12:15], s23 offen offset:{1024*k}")
        else:
            if k == 4:
                a("    s_add_u32 s23, s23, 4096")
            a(f"    buffer_load_dword v{32+k}, v5, s[12:15], s23 offen offset:{1024*(k-4)}")
    a("    s_waitcnt vmcnt(12)")
    reduce_key(a, 56, 20)
    a(f"""    s_and_b32 s21, s20, 0xffff
    s_sub_u32 s21, 0xffff, s21              ; token
    s_lshr_b32 s24, s21, 3                  ; slot
    s_mul_i32 s24, s24, 2560
    s_add_u32 s24, s24, {CH_OFF}
    s_lshl_b32 s25, s18, 4
    s_add_u32 s24, s24, s25
    v_and_b32 v6, 7, v0
    v_lshlrev_b32 v6, 1, v6
    buffer_load_ushort v60, v6, s[12:15], s24 offen
    buffer_load_ushort v61, v6, s[12:15], s24 offen offset:1280
    s_lshr_b32 s26, s20, 16
    s_xor_b32 s27, s26, 0xffff
    s_and_b32 s28, s26, 0x7fff
    s_bitcmp1_b32 s26, 15
    s_cselect_b32 s26, s28, s27
    s_lshl_b32 s26, s26, 16                 ; r as f32
    s_mul_i32 s21, s21, 1280
    s_add_u32 s21, s21, s25
    s_waitcnt vmcnt(2)""")
    for k in range(6):
        for p in range(4):
            a(f"    v_lshlrev_b32 v52, 16, v{8+4*k+p}")
            a(f"    v_and_b32 v53, 0xffff0000, v{8+4*k+p}")
            if k == 0:
                a(f"    v_mul_f32 v{40+2*p}, v{32+k}, v52")
                a(f"    v_mul_f32 v{41+2*p}, v{32+k}, v53")
            else:
                a(f"    v_fmac_f32 v{40+2*p}, v{32+k}, v52")
                a(f"    v_fmac_f32 v{41+2*p}, v{32+k}, v53")
    dpp_reduce(a, list(range(40, 48)))
    a("""    s_lshl_b32 s22, s3, 5
    v_mov_b32 v48, s22
    v_cmp_eq_u32 vcc, 63, v2
    s_and_saveexec_b64 s[30:31], vcc
    ds_write_b128 v48, v[40:43]
    ds_write_b128 v48, v[44:47] offset:16
    s_mov_b64 exec, s[30:31]
    s_waitcnt lgkmcnt(0)
    s_barrier
    v_cmp_gt_u32 vcc, 8, v0
    s_and_saveexec_b64 s[30:31], vcc
    s_cbranch_execz L_k5_done
    v_lshlrev_b32 v48, 2, v0
    ds_read_b32 v49, v48
    ds_read_b32 v50, v48 offset:32
    ds_read_b32 v51, v48 offset:64
    ds_read_b32 v52, v48 offset:96
    v_mov_b32 v53, s26
    v_mul_f32 v53, 0xbfb8aa3b, v53
    v_exp_f32 v53, v53
    s_nop 0
    v_add_f32 v53, 1.0, v53
    v_rcp_f32 v53, v53
    s_waitcnt vmcnt(0) lgkmcnt(0)
    v_add_f32 v49, v49, v50
    v_add_f32 v51, v51, v52
    v_add_f32 v49, v49, v51                 ; y""")
    round_bf16_pair(a, 54, 49, 53)
    a("""    v_mul_f32 v49, v49, v53
    v_cvt_pk_bf16_f32 v49, v49, v49
    v_lshlrev_b32 v49, 16, v49              ; y2
    v_lshlrev_b32 v60, 16, v60              ; h
    v_lshlrev_b32 v61, 16, v61              ; ln
    v_add_f32 v49, v49, v61
    v_cvt_pk_bf16_f32 v49, v49, v49
    v_lshlrev_b32 v49, 16, v49
    v_add_f32 v49, v49, v60
    v_cvt_pk_bf16_f32 v49, v49, v49
    buffer_store_short v49, v6, s[44:47], s21 offen
L_k5_done:
    s_endpgm""")

if __name__ == "__main__":
    out = sys.argv[1] if len(sys.argv) > 1 else "sequential_preLN__ssm_conv_s4__moe_arch_mod__prompt.s"
    open(out, "w").write(gen())
    print("wrote", out)
```

```python
import sys, os, re

UT_OFF = 0
UTS = 4352
KR_OFF = 0x300000
KRS = 5120
KS_OFF = 0x700000
YB_OFF = 0x800000
YBS = 10368
CK_OFF = 0xC00000
CH_OFF = 0xC10000
GU_OFF = 0xD00000
WS_SIZE = 0x10000000
ST_OFF = 0xE00000
STAMP = bool(os.environ.get('STAMP'))

class Asm:
    def __init__(self):
        self.lines = []
    def __call__(self, s):
        for l in s.strip("\n").split("\n"):
            m = re.search(r"offset:(\d+)", l)
            if m:
                lim = 4095 if "buffer_" in l else (65535 if "ds_" in l else 4095)
                assert int(m.group(1)) <= lim, l
            self.lines.append(l)
    def text(self):
        return "\n".join(self.lines) + "\n"

def header(a, name):
    a(f".globl {name}\n.p2align 8\n.type {name},@function\n{name}:")

def desc(name, vgpr, sgpr=96, accum=None):
    if accum is None:
        accum = (vgpr + 3) // 4 * 4
    return f"""
.p2align 6
.amdhsa_kernel {name}
  .amdhsa_next_free_vgpr {vgpr}
  .amdhsa_next_free_sgpr {sgpr}
  .amdhsa_accum_offset {accum}
  .amdhsa_group_segment_fixed_size 0
  .amdhsa_kernarg_size 136
  .amdhsa_user_sgpr_count 2
  .amdhsa_user_sgpr_kernarg_segment_ptr 1
  .amdhsa_system_sgpr_workgroup_id_x 1
.end_amdhsa_kernel
"""

def srd(a, d, lo, size):
    a(f"""    s_mov_b32 s{d}, s{lo}
    s_mov_b32 s{d+1}, s{lo+1}
    s_mov_b32 s{d+2}, {size}
    s_mov_b32 s{d+3}, 0x00020000""")

DPP_STEPS = ["row_shr:1 row_mask:0xf bank_mask:0xf",
             "row_shr:2 row_mask:0xf bank_mask:0xf",
             "row_shr:4 row_mask:0xf bank_mask:0xf",
             "row_shr:8 row_mask:0xf bank_mask:0xf",
             "row_bcast:15 row_mask:0xa bank_mask:0xf",
             "row_bcast:31 row_mask:0xc bank_mask:0xf"]

def dpp_reduce(a, regs, op="v_add_f32"):
    n = len(regs)
    pad = max(0, 3 - n)
    a("    s_nop 1")
    for st in DPP_STEPS:
        for r in regs:
            a(f"    {op}_dpp v{r}, v{r}, v{r} {st}")
        if pad:
            a(f"    s_nop {pad-1}")

def round_bf16_pair(a, p, x0, x1):
    a(f"""    v_cvt_pk_bf16_f32 v{p}, v{x0}, v{x1}
    v_lshlrev_b32 v{x0}, 16, v{p}
    v_and_b32 v{x1}, 0xffff0000, v{p}""")

INV640 = "0x3acccccd"
EPS = "0x3727c5ac"
LOG2E = "0x3fb8aa3b"
INV2PI = "0x3e22f983"

def ln_stats(a, X, ntok, vs, vt, s_mean, s_mb, s_rs):
    for t in range(ntok):
        a(f"    v_add_f32 v{vs[t]}, v{X[t][0]}, v{X[t][1]}")
    for j in range(2, 10):
        for t in range(ntok):
            a(f"    v_add_f32 v{vs[t]}, v{vs[t]}, v{X[t][j]}")
    dpp_reduce(a, vs[:ntok])
    for t in range(ntok):
        a(f"    v_mul_f32 v{vs[t]}, {INV640}, v{vs[t]}")
    a("    s_nop 0")
    for t in range(ntok):
        a(f"    v_readlane_b32 s{s_mean[t]}, v{vs[t]}, 63")
    a("    s_nop 1")
    for j in range(10):
        for t in range(ntok):
            a(f"    v_subrev_f32 v{vt[t]+0}, s{s_mean[t]}, v{X[t][j]}") if False else None
    return

def gen():
    a = Asm()
    a("; @launch kernel=ln1_kgen_kernel grid=(768,1,1) block=(256,1,1) lds=16640")
    a("; @launch kernel=conv_kernel grid=(640,1,1) block=(256,1,1) lds=38912")
    a("; @launch kernel=ln2_kernel grid=(256,1,1) block=(256,1,1) lds=64")
    a("; @launch kernel=ffn1_kernel grid=(192,1,1) block=(256,1,1) lds=256")
    a("; @launch kernel=ffn2_kernel grid=(80,1,1) block=(256,1,1) lds=256")
    a('.amdgcn_target "amdgcn-amd-amdhsa--gfx950"\n.text')
    k1(a); k2(a); k3(a); k4(a); k5(a)
    a('.section .rodata,"a"')
    a(desc("ln1_kgen_kernel", 96))
    a(desc("conv_kernel", 96))
    a(desc("ln2_kernel", 80))
    a(desc("ffn1_kernel", 64))
    a(desc("ffn2_kernel", 64))
    return a.text()

def stats(a, X, vS, vD, sM, sMB, sRS):
    n = len(X)
    for t in range(n):
        a(f"    v_add_f32 v{vS[t]}, v{X[t][0]}, v{X[t][1]}")
    for j in range(2, 10):
        for t in range(n):
            a(f"    v_add_f32 v{vS[t]}, v{vS[t]}, v{X[t][j]}")
    dpp_reduce(a, vS)
    a("    s_nop 0")
    for t in range(n):
        a(f"    v_mul_f32 v{vS[t]}, {INV640}, v{vS[t]}")
    a("    s_nop 0")
    for t in range(n):
        a(f"    v_readlane_b32 s{sM[t]}, v{vS[t]}, 63")
    for t in range(n):
        a(f"    v_cvt_pk_bf16_f32 v{vS[t]}, v{vS[t]}, v{vS[t]}")
    for t in range(n):
        a(f"    v_lshlrev_b32 v{vS[t]}, 16, v{vS[t]}")
    a("    s_nop 0")
    for t in range(n):
        a(f"    v_readlane_b32 s{sMB[t]}, v{vS[t]}, 63")
    for t in range(n):
        a(f"    v_subrev_f32 v{vD[t]}, s{sM[t]}, v{X[t][0]}")
    for t in range(n):
        a(f"    v_mul_f32 v{vS[t]}, v{vD[t]}, v{vD[t]}")
    for j in range(1, 10):
        for t in range(n):
            a(f"    v_subrev_f32 v{vD[t]}, s{sM[t]}, v{X[t][j]}")
        for t in range(n):
            a(f"    v_fmac_f32 v{vS[t]}, v{vD[t]}, v{vD[t]}")
    dpp_reduce(a, vS)
    a("    s_nop 0")
    for t in range(n):
        a(f"    v_mul_f32 v{vS[t]}, {INV640}, v{vS[t]}")
    for t in range(n):
        a(f"    v_cvt_pk_bf16_f32 v{vS[t]}, v{vS[t]}, v{vS[t]}")
    for t in range(n):
        a(f"    v_lshlrev_b32 v{vS[t]}, 16, v{vS[t]}")
    for t in range(n):
        a(f"    v_add_f32 v{vS[t]}, {EPS}, v{vS[t]}")
    for t in range(n):
        a(f"    v_cvt_pk_bf16_f32 v{vS[t]}, v{vS[t]}, v{vS[t]}")
    for t in range(n):
        a(f"    v_lshlrev_b32 v{vS[t]}, 16, v{vS[t]}")
    for t in range(n):
        a(f"    v_sqrt_f32 v{vS[t]}, v{vS[t]}")
    a("    s_nop 0")
    for t in range(n):
        a(f"    v_cvt_pk_bf16_f32 v{vS[t]}, v{vS[t]}, v{vS[t]}")
    for t in range(n):
        a(f"    v_lshlrev_b32 v{vS[t]}, 16, v{vS[t]}")
    for t in range(n):
        a(f"    v_rcp_f32 v{vS[t]}, v{vS[t]}")
    a("    s_nop 0")
    for t in range(n):
        a(f"    v_readlane_b32 s{sRS[t]}, v{vS[t]}, 63")
    a("    s_nop 1")

def k1(a):
    header(a, "ln1_kgen_kernel")
    a("""    s_cmp_ge_u32 s2, 768
    s_cbranch_scc1 L_k1_done
    s_cmp_ge_u32 s2, 128
    s_cbranch_scc1 L_kgen""")
    if os.environ.get("NO_LN1"): a("    s_branch L_k1_done")
    a("""    s_load_dwordx2 s[4:5], s[0:1], 0        ; A_u
    s_load_dwordx2 s[6:7], s[0:1], 128      ; ws
    v_lshrrev_b32 v1, 6, v0
    v_and_b32 v2, 63, v0                    ; lane
    s_nop 0
    v_readfirstlane_b32 s3, v1
    s_waitcnt lgkmcnt(0)""")
    srd(a, 8, 4, 2621440)
    srd(a, 12, 6, WS_SIZE)
    a("""    s_lshl_b32 s16, s2, 4
    s_lshl_b32 s17, s3, 2
    s_add_u32 s16, s16, s17                 ; t0
    s_mul_i32 s17, s16, 1280
    s_add_u32 s18, s17, 2560
    v_lshlrev_b32 v3, 2, v2                 ; lane*4""")
    RAW = 4
    for t in range(4):
        for k in range(5):
            so = "s17" if t < 2 else "s18"
            a(f"    buffer_load_dword v{RAW+5*t+k}, v3, s[8:11], {so} offen offset:{(t&1)*1280+256*k}")
    X = [[24 + 10*t + j for j in range(10)] for t in range(4)]
    for t in range(4):
        a(f"    s_waitcnt vmcnt({15-5*t})")
        for k in range(5):
            a(f"    v_lshlrev_b32 v{X[t][2*k]}, 16, v{RAW+5*t+k}")
            a(f"    v_and_b32 v{X[t][2*k+1]}, 0xffff0000, v{RAW+5*t+k}")
    vS = [64, 65, 66, 67]; vD = [68, 69, 70, 71]
    sM = [20, 21, 22, 23]; sMB = [24, 25, 26, 27]; sRS = [28, 29, 30, 31]
    stats(a, X, vS, vD, sM, sMB, sRS)
    a(f"""    s_mov_b32 s32, {2*UTS}
    v_mul_lo_u32 v72, v2, s32               ; lane*2*UTS
    v_add_u32 v73, {UTS}, v72
    s_lshl_b32 s33, s16, 1
    s_add_u32 s33, s33, {UT_OFF+128}        ; + 2*t0""")
    for j in range(10):
        for tp in range(2):
            t0, t1 = 2*tp, 2*tp+1
            x0, x1 = X[t0][j], X[t1][j]
            a(f"    v_subrev_f32 v{x0}, s{sMB[t0]}, v{x0}")
            a(f"    v_subrev_f32 v{x1}, s{sMB[t1]}, v{x1}")
            round_bf16_pair(a, 74, x0, x1)
            a(f"    v_mul_f32 v{x0}, s{sRS[t0]}, v{x0}")
            a(f"    v_mul_f32 v{x1}, s{sRS[t1]}, v{x1}")
            round_bf16_pair(a, 74, x0, x1)
            a(f"    v_cvt_pk_f16_f32 v{4+2*j+tp}, v{x0}, v{x1}")
        k, hh = j // 2, j & 1
        if hh == 0:
            if k == 0:
                a("    s_mov_b32 s34, s33")
            else:
                a(f"    s_add_u32 s34, s34, {128*UTS}")
        a(f"    buffer_store_dwordx2 v[{4+2*j}:{5+2*j}], v{72+hh}, s[12:15], s34 offen")
    a("""    s_cmp_lg_u32 s16, 0
    s_cbranch_scc1 L_k1_done
    v_mov_b32 v76, 0
    v_mov_b32 v77, 0
    v_mov_b32 v78, 0
    v_mov_b32 v79, 0""")
    a(f"    s_mov_b32 s34, {UT_OFF+96}")
    for k in range(5):
        for hh in range(2):
            a(f"    buffer_store_dwordx4 v[76:79], v{72+hh}, s[12:15], s34 offen")
            a(f"    buffer_store_dwordx4 v[76:79], v{72+hh}, s[12:15], s34 offen offset:16")
        if k < 4:
            a(f"    s_add_u32 s34, s34, {128*UTS}")
    a("    s_branch L_k1_done")

    PRM = 0; PART = 4096; EW = 16384
    a("L_kgen:")
    if os.environ.get("NO_KGEN"): a("    s_branch L_k1_done")
    a("""    s_sub_u32 s2, s2, 128                   ; d
    s_load_dwordx4 s[4:7], s[0:1], 8
    s_load_dwordx4 s[8:11], s[0:1], 24
    s_load_dwordx4 s[12:15], s[0:1], 40
    s_load_dwordx2 s[16:17], s[0:1], 56     ; log_dt
    s_load_dwordx2 s[18:19], s[0:1], 128    ; ws
    v_lshrrev_b32 v1, 6, v0
    v_and_b32 v2, 63, v0                    ; lane
    s_nop 0
    v_readfirstlane_b32 s3, v1
    v_min_u32 v3, 47, v2
    s_mul_i32 s20, s2, 384
    s_mul_i32 s21, s3, 96
    s_add_u32 s20, s20, s21
    v_lshlrev_b32 v3, 1, v3
    v_add_u32 v3, s20, v3
    s_lshl_b32 s21, s2, 1
    v_mov_b32 v4, s21
    s_waitcnt lgkmcnt(0)
    global_load_ushort v5, v3, s[4:5]
    global_load_ushort v6, v3, s[6:7]
    global_load_ushort v7, v3, s[8:9]
    global_load_ushort v8, v3, s[10:11]
    global_load_ushort v9, v3, s[12:13]
    global_load_ushort v10, v3, s[14:15]
    global_load_ushort v11, v4, s[16:17]""")
    srd(a, 24, 18, WS_SIZE)
    a("""    v_and_b32 v12, 15, v2                   ; rho
    v_lshrrev_b32 v13, 4, v2                ; g
    v_cvt_f32_u32 v14, v12
    v_lshlrev_b32 v15, 4, v12
    v_cvt_f32_u32 v17, v15
    ; lf1
    v_lshlrev_b32 v18, 1, v12
    v_add_u32 v18, 256, v18                 ; 256+2rho
    v_bfe_u32 v19, v12, 2, 1
    v_lshlrev_b32 v19, 8, v19
    v_and_b32 v20, 3, v12
    v_lshlrev_b32 v20, 2, v20
    v_add3_u32 v19, v19, v20, 64
    v_add_u32 v19, 448, v19
    v_cmp_gt_u32 vcc, 8, v12
    ; lf2
    v_lshrrev_b32 v20, 1, v12
    v_lshlrev_b32 v20, 8, v20
    v_and_b32 v21, 1, v12
    v_lshlrev_b32 v21, 3, v21
    v_add_u32 v20, v20, v21
    v_add_u32 v20, 1024, v20                ; 1024+256*(rho>>1)+8*(rho&1)
    v_cndmask_b32 v18, v19, v18, vcc
    v_cndmask_b32 v20, 0, v20, vcc
    v_cmp_eq_u32 vcc, 8, v12
    v_mov_b32 v21, 2048
    v_cvt_f32_u32 v15, v18                  ; lf1
    v_cndmask_b32 v20, v20, v21, vcc
    v_cvt_f32_u32 v16, v20                  ; lf2
    s_lshl_b32 s22, s3, 10
    v_lshlrev_b32 v22, 6, v13
    v_add_u32 v22, s22, v22
    v_lshlrev_b32 v23, 4, v2
    v_add_u32 v23, s22, v23
    s_waitcnt vmcnt(0)
    v_lshlrev_b32 v5, 16, v5
    v_lshlrev_b32 v6, 16, v6
    v_lshlrev_b32 v7, 16, v7
    v_lshlrev_b32 v8, 16, v8
    v_lshlrev_b32 v9, 16, v9
    v_lshlrev_b32 v10, 16, v10
    v_lshlrev_b32 v11, 16, v11""")
    a(f"""    v_mul_f32 v11, {LOG2E}, v11
    v_exp_f32 v11, v11
    s_nop 0
    v_cvt_pk_bf16_f32 v11, v11, v11
    v_lshlrev_b32 v11, 16, v11
    v_mul_f32 v24, v11, v5                  ; ar
    v_mul_f32 v25, v11, v6                  ; ai
    v_mul_f32 v24, {LOG2E}, v24             ; ar2
    v_mul_f32 v25, {INV2PI}, v25            ; ai2
    v_mul_f32 v7, v11, v7                   ; dBr
    v_mul_f32 v8, v11, v8                   ; dBi
    v_mul_f32 v26, v10, v8                  ; Ci*dBi
    v_mul_f32 v27, v10, v7                  ; Ci*dBr
    v_fma_f32 v26, v9, v7, -v26             ; cr
    v_fma_f32 v27, v9, v8, v27              ; ci
    v_max_f32 v28, abs(v26), abs(v27)""")
    dpp_reduce(a, [28], op="v_max_f32")
    a("""    s_nop 0
    v_frexp_exp_i32_f32 v28, v28
    s_nop 0
    v_readlane_b32 s23, v28, 63             ; e
    s_nop 3
    s_sub_u32 s28, 127, s23
    s_lshl_b32 s28, s28, 23                 ; 2^-e
    s_add_u32 s29, 127, s23
    s_lshl_b32 s29, s29, 23                 ; 2^e
    v_mul_f32 v26, s28, v26
    v_mul_f32 v27, s28, v27
    v_mov_b32 v28, s23""")
    a(f"""    s_lshl_b32 s30, s3, 2
    s_add_u32 s30, s30, {EW}
    v_mov_b32 v29, s30
    ds_write_b128 v23, v[24:27]
    ds_write_b32 v29, v28
    v_mov_b32 v80, 0
    v_mov_b32 v81, 0
    v_mov_b32 v82, 0
    v_mov_b32 v83, 0
    v_mov_b32 v84, 0
    v_mov_b32 v85, 0
    v_mov_b32 v86, 0
    v_mov_b32 v87, 0
    v_mov_b32 v88, 0
    v_mov_b32 v89, 0
    v_mov_b32 v90, 0
    v_mov_b32 v91, 0
    s_waitcnt lgkmcnt(0)""")
    LF = [14, 15, 16, 17]
    for q in range(3):
        for i in range(4):
            a(f"    ds_read_b128 v[{32+4*i}:{35+4*i}], v22 offset:{PRM + 256*q + 16*i}")
        for i in range(4):
            a(f"    s_waitcnt lgkmcnt({3-i})")
            P = 32 + 4*i
            for T in range(4):
                a(f"    v_mul_f32 v{64+T}, v{P}, v{LF[T]}")
                a(f"    v_mul_f32 v{68+T}, v{P+1}, v{LF[T]}")
            for T in range(4):
                a(f"    v_exp_f32 v{64+T}, v{64+T}")
                a(f"    v_fract_f32 v{68+T}, v{68+T}")
            for T in range(4):
                a(f"    v_cos_f32 v{72+T}, v{68+T}")
                a(f"    v_sin_f32 v{76+T}, v{68+T}")
            for T in range(3):
                a(f"    v_fma_mixlo_f16 v{48+4*T+i}, v{64+T}, v{72+T}, 0")
                a(f"    v_fma_mixhi_f16 v{48+4*T+i}, -v{64+T}, v{76+T}, 0")
            a(f"""    v_mul_f32 v75, v67, v75
    v_mul_f32 v79, v67, v79
    v_mul_f32 v67, v{P+3}, v79              ; ci*ei
    v_mul_f32 v71, v{P+3}, v75              ; ci*er
    v_fma_mixlo_f16 v{60+i}, v{P+2}, v75, -v67
    v_fma_mixhi_f16 v{60+i}, v{P+2}, v79, v71""")
        a("    s_nop 1")
        for T in range(3):
            a(f"    v_mfma_f32_16x16x32_f16 v[{80+4*T}:{83+4*T}], v[{48+4*T}:{51+4*T}], v[60:63], v[{80+4*T}:{83+4*T}]")
    a(f"""    s_mul_i32 s31, s3, 3072
    s_add_u32 s31, s31, {PART}
    ; t0: 4*(16rho+4g)
    v_lshlrev_b32 v32, 6, v12
    v_lshl_add_u32 v32, v13, 4, v32
    v_add_u32 v32, s31, v32
    v_lshlrev_b32 v33, 5, v12
    v_lshl_add_u32 v33, v13, 4, v33
    v_add_u32 v33, 1024, v33
    v_lshlrev_b32 v34, 4, v12
    v_lshl_add_u32 v34, v13, 8, v34
    v_add_u32 v34, 1024, v34                ; 4*(384-128) = 1024
    v_cmp_gt_u32 vcc, 2, v13
    v_lshlrev_b32 v35, 3, v12
    v_lshl_add_u32 v35, v13, 8, v35
    v_add_u32 v35, 2048, v35
    v_lshlrev_b32 v36, 3, v2
    v_add_u32 v36, 2304, v36                ; 4*640 - 8*32 = 2304
    v_cndmask_b32 v33, v34, v33, vcc
    v_cndmask_b32 v35, v36, v35, vcc
    v_add_u32 v33, s31, v33
    v_add_u32 v35, s31, v35""")
    for r in range(80, 92):
        a(f"    v_mul_f32 v{r}, s29, v{r}")
    a(f"""    ds_write_b128 v32, v[80:83]
    ds_write_b128 v33, v[84:87]
    ds_write_b64 v35, v[88:89]
    ds_write_b64 v35, v[90:91] offset:128
    v_lshlrev_b32 v37, 3, v0
    v_sub_u32 v37, 2047, v37                ; x0 = 2047-8tid
    v_cmp_le_u32 vcc, 240, v0""")
    for i in range(8):
        a(f"    v_subrev_u32 v{40+i}, {i}, v37")
    for i in range(8):
        a(f"    v_cvt_f32_u32 v{48+i}, v{40+i}")
    for i in range(0, 8, 2):
        a(f"    v_cvt_pk_bf16_f32 v{56+i//2}, v{48+i}, v{49+i}")
    for i in range(0, 8, 2):
        a(f"    v_and_b32 v{48+i}, 0xffff, v{56+i//2}")
        a(f"    v_lshrrev_b32 v{49+i}, 16, v{56+i//2}")
    for i in range(8):
        a(f"    v_subrev_u32 v{48+i}, 17024, v{48+i}")
    for i in range(8):
        a(f"    v_cndmask_b32 v{48+i}, v{48+i}, v{40+i}, vcc")
    for i in range(8):
        a(f"    v_lshlrev_b32 v{48+i}, 2, v{48+i}")
    a(f"""    v_mov_b32 v38, {EW}
    s_waitcnt lgkmcnt(0)
    s_barrier
    ds_read_b128 v[60:63], v38""")
    for i in range(8):
        for w in range(4):
            a(f"    ds_read_b32 v{64+4*(i&3)+w}, v{48+i} offset:{PART+3072*w}")
        if i == 3 or i == 7:
            a("    s_waitcnt lgkmcnt(0)")
            for ii in range(i-3, i+1):
                b = 64 + 4*(ii & 3)
                a(f"    v_add_f32 v{b}, v{b}, v{b+1}")
                a(f"    v_add_f32 v{b+2}, v{b+2}, v{b+3}")
                a(f"    v_add_f32 v{40+ii}, v{b}, v{b+2}")
    a(f"""    v_max_i32 v60, v60, v61
    v_max_i32 v62, v62, v63
    v_max_i32 v60, v60, v62
    v_max_i32 v60, -100, v60
    v_min_i32 v60, 100, v60                 ; E
    v_sub_u32 v61, 133, v60
    v_lshlrev_b32 v61, 23, v61              ; 2^(6-E)
    v_add_u32 v62, 121, v60
    v_lshlrev_b32 v62, 23, v62              ; 2^(E-6)""")
    for i in range(8):
        a(f"    v_mul_f32 v{40+i}, v61, v{40+i}")
    for i in range(0, 8, 2):
        a(f"    v_cvt_pk_f16_f32 v{48+i//2}, v{40+i}, v{41+i}")
    a(f"""    s_mul_i32 s31, s2, {KRS}
    s_add_u32 s31, s31, {KR_OFF}
    v_lshlrev_b32 v52, 4, v0
    buffer_store_dwordx4 v[48:51], v52, s[24:27], s31 offen
    v_mov_b32 v56, 0
    v_mov_b32 v57, 0
    v_mov_b32 v58, 0
    v_mov_b32 v59, 0
    s_add_u32 s31, s31, 4096
    s_lshl_b32 s30, s2, 2
    s_add_u32 s30, s30, {KS_OFF}
    v_mov_b32 v53, 0
    v_cmp_gt_u32 vcc, 32, v0
    s_and_saveexec_b64 s[32:33], vcc
    s_cbranch_execz L_k1_done
    buffer_store_dwordx4 v[56:59], v52, s[24:27], s31 offen
    buffer_store_dword v62, v53, s[24:27], s30 offen
L_k1_done:
    s_endpgm""")

def k2(a):
    KRB = 33792
    header(a, "conv_kernel")
    a("""    s_cmp_ge_u32 s2, 640
    s_cbranch_scc1 L_k2_done""")
    if STAMP: a("    s_memrealtime s[60:61]")
    a("""    s_load_dwordx2 s[4:5], s[0:1], 128      ; ws
    s_load_dwordx2 s[6:7], s[0:1], 64       ; Dskip
    v_lshrrev_b32 v1, 6, v0
    v_and_b32 v2, 63, v0                    ; lane
    s_nop 0
    v_readfirstlane_b32 s3, v1
    s_lshl_b32 s16, s2, 1
    s_and_b32 s16, s16, 0xfffffffc
    s_lshl_b32 s17, s2, 2
    s_waitcnt lgkmcnt(0)
    s_load_dword s18, s[6:7], s16""")
    a(f"    s_add_u32 s17, s17, {KS_OFF}")
    a("    s_load_dword s19, s[4:5], s17           ; Kinv")
    srd(a, 8, 4, WS_SIZE)
    a(f"""    s_mul_i32 s20, s2, {UTS}
    s_add_u32 s20, s20, {UT_OFF+96}
    s_mul_i32 s21, s2, {KRS}
    s_add_u32 s21, s21, {KR_OFF}
    v_lshlrev_b32 v3, 4, v2                 ; 16*lane
    s_mov_b32 s23, 16132
    s_movk_i32 s24, 4158""")
    a("    s_lshl_b32 s22, s3, 10                  ; 1024*i")
    for it in range(9):
        if it == 8:
            a("    s_cmp_lg_u32 s3, 0\n    s_cbranch_scc1 L_k2_skip9")
        a(f"""    v_add_u32 v4, s22, v3                   ; P
    v_lshrrev_b32 v5, 4, v4
    v_mul_u32_u24 v5, s23, v5
    v_lshrrev_b32 v5, 22, v5                ; j
    v_mul_u32_u24 v5, s24, v5
    v_sub_u32 v4, v4, v5
    s_mov_b32 m0, s22
    s_nop 0
    buffer_load_dwordx4 v4, s[8:11], s20 offen lds""")
        if it < 8:
            a("    s_add_u32 s22, s22, 4096")
    a("L_k2_skip9:")
    a(f"""    s_lshl_b32 s22, s3, 10
    s_add_u32 s25, s22, s21
    s_add_u32 s22, s22, {KRB}
    s_mov_b32 m0, s22
    s_nop 0
    buffer_load_dwordx4 v3, s[8:11], s25 offen lds
    s_cmp_lg_u32 s3, 1
    s_cbranch_scc1 L_k2_skipkr
    s_add_u32 s25, s21, 4096
    s_mov_b32 m0, {KRB+4096}
    s_nop 0
    buffer_load_dwordx4 v3, s[8:11], s25 offen lds
L_k2_skipkr:""")
    a(f"""    v_and_b32 v4, 15, v2                    ; b / a'
    v_lshrrev_b32 v5, 4, v2                 ; g
    v_add_u32 v6, 1, v4
    v_and_b32 v7, 7, v6
    v_mul_u32_u24 v7, 4160, v7
    v_lshrrev_b32 v6, 3, v6
    v_add_u32 v6, v6, v5
    v_lshl_add_u32 v7, v6, 4, v7
    s_lshl_b32 s22, s3, 7
    v_add_u32 v7, s22, v7                   ; A base
    v_lshlrev_b32 v8, 5, v4
    v_lshlrev_b32 v9, 4, v5
    v_sub_u32 v8, v9, v8
    s_add_u32 s22, s22, {KRB}
    v_add_u32 v8, s22, v8                   ; B base
    v_lshlrev_b32 v9, 4, v0""")
    ACC = 16
    AF = 48
    BF = 80
    for r in range(32):
        a(f"    v_mov_b32 v{ACC+r}, 0")
    a("""    s_waitcnt vmcnt(0) lgkmcnt(0)
    s_barrier""")
    if STAMP: a("    s_memrealtime s[62:63]\n    s_waitcnt lgkmcnt(0)")
    a("""    ds_read_b128 v[88:91], v9 offset:32""")
    for res in range(2):
        for q in range(8):
            a(f"    ds_read_b128 v[{AF+4*q}:{AF+4*q+3}], v7 offset:{512*q+64*res}")
        a(f"    ds_read_b128 v[{BF}:{BF+3}], v8 offset:{4064+64*res}")
        for v in range(8):
            cur = BF + 4*(v & 1); nxt = BF + 4*((v+1) & 1)
            if v < 7:
                a(f"    ds_read_b128 v[{nxt}:{nxt+3}], v8 offset:{4064-512*(v+1)+64*res}")
                a("    s_waitcnt lgkmcnt(1)")
            else:
                a("    s_waitcnt lgkmcnt(0)")
            for q in range(8 - v):
                t = q + v
                a(f"    v_mfma_f32_16x16x32_f16 v[{ACC+4*t}:{ACC+4*t+3}], v[{AF+4*q}:{AF+4*q+3}], v[{cur}:{cur+3}], v[{ACC+4*t}:{ACC+4*t+3}]")
    a(f"""    s_lshl_b32 s22, s3, 13
    v_lshlrev_b32 v10, 6, v4
    v_lshl_add_u32 v10, v5, 4, v10
    v_add_u32 v10, s22, v10
    v_lshlrev_b32 v11, 5, v0
    s_nop 4
    s_barrier""")
    if STAMP: a("    s_memrealtime s[64:65]\n    s_waitcnt lgkmcnt(0)")
    for t in range(8):
        a(f"    ds_write_b128 v10, v[{ACC+4*t}:{ACC+4*t+3}] offset:{1024*t}")
    a("""    s_waitcnt lgkmcnt(0)
    s_barrier""")
    for w in range(4):
        for hf in range(2):
            a(f"    ds_read_b128 v[{ACC+8*w+4*hf}:{ACC+8*w+4*hf+3}], v11 offset:{8192*w+16*hf}")
    a("""    s_bitcmp1_b32 s2, 0
    s_cbranch_scc1 L_k2_odd
    s_lshl_b32 s18, s18, 16
L_k2_odd:
    s_and_b32 s18, s18, 0xffff0000""")
    for i in range(4):
        a(f"    v_cvt_f32_f16 v{48+2*i}, v{88+i}")
        a(f"    v_cvt_f32_f16_sdwa v{49+2*i}, v{88+i} dst_sel:DWORD dst_unused:UNUSED_PAD src0_sel:WORD_1")
    for i in range(8):
        a(f"    v_mul_f32 v{48+i}, s18, v{48+i}")
    for i in range(0, 8, 2):
        round_bf16_pair(a, 56, 48+i, 49+i)
    a("    s_waitcnt lgkmcnt(0)")
    for i in range(8):
        a(f"    v_add_f32 v{ACC+i}, v{ACC+i}, v{ACC+8+i}")
        a(f"    v_add_f32 v{ACC+16+i}, v{ACC+16+i}, v{ACC+24+i}")
    for i in range(8):
        a(f"    v_add_f32 v{ACC+i}, v{ACC+i}, v{ACC+16+i}")
    for i in range(8):
        a(f"    v_mul_f32 v{ACC+i}, s19, v{ACC+i}")
    for i in range(0, 8, 2):
        round_bf16_pair(a, 56, ACC+i, ACC+i+1)
    for i in range(8):
        a(f"    v_add_f32 v{ACC+i}, v{ACC+i}, v{48+i}")
    for i in range(0, 8, 2):
        a(f"    v_cvt_pk_bf16_f32 v{60+i//2}, v{ACC+i}, v{ACC+i+1}")
    a(f"""    s_mov_b32 s22, {YBS}
    v_mul_lo_u32 v12, v0, s22
    s_lshl_b32 s23, s2, 4
    s_add_u32 s23, s23, {YB_OFF}
    buffer_store_dwordx4 v[60:63], v12, s[8:11], s23 offen""")
    if STAMP:
        a(f"""    s_waitcnt vmcnt(0)
    s_memrealtime s[66:67]
    s_waitcnt lgkmcnt(0)
    v_mov_b32 v60, s60
    v_mov_b32 v61, s62
    v_mov_b32 v62, s64
    v_mov_b32 v63, s66
    s_lshl_b32 s23, s2, 6
    s_lshl_b32 s22, s3, 4
    s_add_u32 s23, s23, s22
    s_add_u32 s23, s23, {ST_OFF}
    v_mov_b32 v12, 0
    buffer_store_dwordx4 v[60:63], v12, s[8:11], s23 offen""")
    a("""L_k2_done:
    s_endpgm""")

def k3(a):
    header(a, "ln2_kernel")
    a("""    s_cmp_ge_u32 s2, 256
    s_cbranch_scc1 L_k3_done
    s_load_dwordx2 s[4:5], s[0:1], 0        ; A_u
    s_load_dwordx2 s[6:7], s[0:1], 128      ; ws
    s_load_dwordx2 s[36:37], s[0:1], 80     ; w_r
    s_load_dwordx2 s[38:39], s[0:1], 112    ; out
    v_lshrrev_b32 v1, 6, v0
    v_and_b32 v2, 63, v0                    ; lane
    s_nop 0
    v_readfirstlane_b32 s3, v1
    s_waitcnt lgkmcnt(0)""")
    srd(a, 8, 4, 2621440)
    srd(a, 12, 6, WS_SIZE)
    srd(a, 40, 36, 1280)
    srd(a, 44, 38, 2621440)
    a(f"""    s_lshl_b32 s16, s2, 3
    s_lshl_b32 s17, s3, 1
    s_add_u32 s16, s16, s17                 ; t0
    s_mul_i32 s17, s16, 1280
    v_lshlrev_b32 v3, 2, v2                 ; lane*4
    s_mul_i32 s18, s2, {YBS}
    s_add_u32 s18, s18, {YB_OFF}
    s_lshl_b32 s19, s3, 2
    s_add_u32 s18, s18, s19
    s_add_u32 s19, s18, 4096
    s_add_u32 s34, s18, 8192
    v_lshlrev_b32 v4, 5, v2                 ; lane*32""")
    for t in range(2):
        for k in range(5):
            a(f"    buffer_load_dword v{6+5*t+k}, v3, s[8:11], s17 offen offset:{t*1280+256*k}")
    for k in range(5):
        for hh in range(2):
            so = ["s18", "s18", "s19", "s19", "s34"][k]
            off = (k & 1) * 2048 + 16 * hh
            a(f"    buffer_load_dword v{16+2*k+hh}, v4, s[12:15], {so} offen offset:{off}")
    for k in range(5):
        a(f"    buffer_load_dword v{26+k}, v3, s[40:43], 0 offen offset:{256*k}")
    H = [[32 + 10*t + j for j in range(10)] for t in range(2)]
    a("    s_waitcnt vmcnt(5)")
    for k in range(5):
        for hh in range(2):
            j = 2*k + hh
            a(f"    v_lshlrev_b32 v52, 16, v{16+j}")
            a(f"    v_and_b32 v53, 0xffff0000, v{16+j}")
            for t in range(2):
                if hh == 0:
                    a(f"    v_lshlrev_b32 v{H[t][j]}, 16, v{6+5*t+k}")
                else:
                    a(f"    v_and_b32 v{H[t][j]}, 0xffff0000, v{6+5*t+k}")
            a(f"    v_add_f32 v{H[0][j]}, v{H[0][j]}, v52")
            a(f"    v_add_f32 v{H[1][j]}, v{H[1][j]}, v53")
            round_bf16_pair(a, 54, H[0][j], H[1][j])
    vS = [52, 53]; vD = [54, 55]
    sM = [20, 21]; sMB = [24, 25]; sRS = [28, 29]
    stats(a, H, vS, vD, sM, sMB, sRS)
    Lr = [[56 + 10*t + j for j in range(10)] for t in range(2)]
    a("    s_waitcnt vmcnt(0)")
    for j in range(10):
        k, hh = j // 2, j & 1
        a(f"    v_subrev_f32 v{Lr[0][j]}, s{sMB[0]}, v{H[0][j]}")
        a(f"    v_subrev_f32 v{Lr[1][j]}, s{sMB[1]}, v{H[1][j]}")
        round_bf16_pair(a, 54, Lr[0][j], Lr[1][j])
        a(f"    v_mul_f32 v{Lr[0][j]}, s{sRS[0]}, v{Lr[0][j]}")
        a(f"    v_mul_f32 v{Lr[1][j]}, s{sRS[1]}, v{Lr[1][j]}")
        round_bf16_pair(a, 54, Lr[0][j], Lr[1][j])
        if hh == 0:
            a(f"    v_lshlrev_b32 v55, 16, v{26+k}")
        else:
            a(f"    v_and_b32 v55, 0xffff0000, v{26+k}")
        if j == 0:
            a(f"    v_mul_f32 v52, v55, v{Lr[0][j]}")
            a(f"    v_mul_f32 v53, v55, v{Lr[1][j]}")
        else:
            a(f"    v_fmac_f32 v52, v55, v{Lr[0][j]}")
            a(f"    v_fmac_f32 v53, v55, v{Lr[1][j]}")
    for t in range(2):
        for k in range(5):
            a(f"    v_add_f32 v54, v{H[t][2*k]}, v{Lr[t][2*k]}")
            a(f"    v_add_f32 v55, v{H[t][2*k+1]}, v{Lr[t][2*k+1]}")
            a(f"    v_cvt_pk_bf16_f32 v{6+5*t+k}, v54, v55")
            a(f"    buffer_store_dword v{6+5*t+k}, v3, s[44:47], s17 offen offset:{t*1280+256*k}")
    dpp_reduce(a, [52, 53])
    a("""    s_nop 0
    v_cvt_pk_bf16_f32 v52, v52, v53
    s_nop 0
    v_readlane_b32 s20, v52, 63
    s_nop 3
    s_and_b32 s21, s20, 0xffff
    s_lshr_b32 s22, s20, 16
    s_xor_b32 s23, s21, 0xffff
    s_or_b32 s24, s21, 0x8000
    s_bitcmp1_b32 s21, 15
    s_cselect_b32 s21, s23, s24
    s_xor_b32 s23, s22, 0xffff
    s_or_b32 s24, s22, 0x8000
    s_bitcmp1_b32 s22, 15
    s_cselect_b32 s22, s23, s24
    s_lshl_b32 s21, s21, 16
    s_lshl_b32 s22, s22, 16
    s_sub_u32 s23, 0xffff, s16
    s_or_b32 s21, s21, s23
    s_sub_u32 s23, s23, 1
    s_or_b32 s22, s22, s23
    s_max_u32 s23, s21, s22
    v_mov_b32 v52, s23
    s_lshl_b32 s24, s3, 2
    v_mov_b32 v53, s24
    ds_write_b32 v53, v52
    v_mov_b32 v53, 0
    s_waitcnt lgkmcnt(0)
    s_barrier
    ds_read_b128 v[76:79], v53
    s_waitcnt lgkmcnt(0)
    v_max_u32 v76, v76, v77
    v_max_u32 v78, v78, v79
    v_max_u32 v76, v76, v78
    s_nop 0
    v_readfirstlane_b32 s24, v76
    s_nop 3
    s_cmp_lg_u32 s24, s23
    s_cbranch_scc1 L_k3_done""")
    a(f"""    s_lshl_b32 s25, s2, 2
    s_add_u32 s25, s25, {CK_OFF}
    buffer_store_dword v52, v53, s[12:15], s25 offen
    s_mul_i32 s25, s2, 2560
    s_add_u32 s25, s25, {CH_OFF}
    s_cmp_eq_u32 s23, s21
    s_cbranch_scc0 L_k3_tok1""")
    for t in range(2):
        if t == 1:
            a("L_k3_tok1:")
        for k in range(5):
            a(f"    v_cvt_pk_bf16_f32 v{16+k}, v{H[t][2*k]}, v{H[t][2*k+1]}")
            a(f"    v_cvt_pk_bf16_f32 v{21+k}, v{Lr[t][2*k]}, v{Lr[t][2*k+1]}")
        for k in range(5):
            a(f"    buffer_store_dword v{16+k}, v3, s[12:15], s25 offen offset:{256*k}")
            a(f"    buffer_store_dword v{21+k}, v3, s[12:15], s25 offen offset:{1280+256*k}")
        if t == 0:
            a("    s_branch L_k3_done")
    a("""L_k3_done:
    s_endpgm""")

def load_key(a, vtmp, s_key):
    a(f"""    v_lshlrev_b32 v{vtmp+4}, 4, v2
    s_mov_b32 s{s_key}, {CK_OFF}
    buffer_load_dwordx4 v[{vtmp}:{vtmp+3}], v{vtmp+4}, s[12:15], s{s_key} offen""")

def reduce_key(a, vtmp, s_key):
    a(f"""    v_max_u32 v{vtmp}, v{vtmp}, v{vtmp+1}
    v_max_u32 v{vtmp+2}, v{vtmp+2}, v{vtmp+3}
    v_max_u32 v{vtmp}, v{vtmp}, v{vtmp+2}""")
    dpp_reduce(a, [vtmp], op="v_max_u32")
    a(f"""    s_nop 0
    v_readlane_b32 s{s_key}, v{vtmp}, 63
    s_nop 3""")

def k4(a):
    header(a, "ffn1_kernel")
    a("""    s_cmp_ge_u32 s2, 192
    s_cbranch_scc1 L_k4_done
    s_load_dwordx4 s[4:7], s[0:1], 88
    s_load_dwordx2 s[16:17], s[0:1], 128    ; ws
    v_lshrrev_b32 v1, 6, v0
    v_and_b32 v2, 63, v0                    ; lane
    s_nop 0
    v_readfirstlane_b32 s3, v1
    s_and_b32 s18, s2, 7
    s_mul_i32 s18, s18, 24
    s_lshr_b32 s19, s2, 3
    s_add_u32 s18, s18, s19                 ; slice
    s_waitcnt lgkmcnt(0)
    s_cmp_ge_u32 s3, 2
    s_cselect_b32 s4, s6, s4
    s_cselect_b32 s5, s7, s5""")
    srd(a, 8, 4, 1966080)
    srd(a, 12, 16, WS_SIZE)
    load_key(a, 56, 20)
    a("""    v_and_b32 v3, 127, v0                   ; r0
    s_movk_i32 s21, 3072
    v_mul_lo_u32 v4, v3, s21
    s_lshl_b32 s22, s18, 4""")
    for k in range(5):
        a(f"    buffer_load_dwordx4 v[{8+4*k}:{11+4*k}], v4, s[8:11], s22 offen")
        if k < 4:
            a(f"    s_add_u32 s22, s22, {128*3072}")
    a("    s_waitcnt vmcnt(5)")
    reduce_key(a, 56, 20)
    a(f"""    s_and_b32 s21, s20, 0xffff
    s_sub_u32 s21, 0xffff, s21              ; token
    s_lshr_b32 s21, s21, 3                  ; slot
    s_mul_i32 s21, s21, 2560
    s_add_u32 s21, s21, {CH_OFF+1280}
    v_lshlrev_b32 v5, 1, v3""")
    for k in range(5):
        a(f"    buffer_load_ushort v{28+k}, v5, s[12:15], s21 offen offset:{256*k}")
    a("    s_waitcnt vmcnt(0)")
    for k in range(5):
        a(f"    v_lshlrev_b32 v{28+k}, 16, v{28+k}")
    for k in range(5):
        for p in range(4):
            a(f"    v_lshlrev_b32 v44, 16, v{8+4*k+p}")
            a(f"    v_and_b32 v45, 0xffff0000, v{8+4*k+p}")
            if k == 0:
                a(f"    v_mul_f32 v{36+2*p}, v{28+k}, v44")
                a(f"    v_mul_f32 v{37+2*p}, v{28+k}, v45")
            else:
                a(f"    v_fmac_f32 v{36+2*p}, v{28+k}, v44")
                a(f"    v_fmac_f32 v{37+2*p}, v{28+k}, v45")
    dpp_reduce(a, list(range(36, 44)))
    a("""    s_lshl_b32 s22, s3, 5
    v_mov_b32 v46, s22
    v_cmp_eq_u32 vcc, 63, v2
    s_and_saveexec_b64 s[24:25], vcc
    ds_write_b128 v46, v[36:39]
    ds_write_b128 v46, v[40:43] offset:16
    s_mov_b64 exec, s[24:25]
    s_waitcnt lgkmcnt(0)
    s_barrier
    v_cmp_gt_u32 vcc, 8, v0
    s_and_saveexec_b64 s[24:25], vcc
    s_cbranch_execz L_k4_done
    v_lshlrev_b32 v46, 2, v0
    ds_read_b32 v47, v46
    ds_read_b32 v48, v46 offset:32
    ds_read_b32 v49, v46 offset:64
    ds_read_b32 v50, v46 offset:96
    s_waitcnt lgkmcnt(0)
    v_add_f32 v47, v47, v48                 ; gate
    v_add_f32 v49, v49, v50                 ; up""")
    round_bf16_pair(a, 51, 47, 49)
    a(f"""    v_mul_f32 v52, 0xbfb8aa3b, v47
    v_exp_f32 v52, v52
    s_nop 0
    v_add_f32 v52, 1.0, v52
    v_rcp_f32 v52, v52
    s_nop 0
    v_mul_f32 v47, v47, v52                 ; silu
    v_cvt_pk_bf16_f32 v47, v47, v47
    v_lshlrev_b32 v47, 16, v47
    v_mul_f32 v47, v47, v49
    v_cvt_pk_bf16_f32 v47, v47, v47
    v_lshlrev_b32 v47, 16, v47
    s_lshl_b32 s22, s18, 5
    s_add_u32 s22, s22, {GU_OFF}
    buffer_store_dword v47, v46, s[12:15], s22 offen
L_k4_done:
    s_endpgm""")

def k5(a):
    header(a, "ffn2_kernel")
    a("""    s_cmp_ge_u32 s2, 80
    s_cbranch_scc1 L_k5_done
    s_load_dwordx2 s[4:5], s[0:1], 104      ; w_down
    s_load_dwordx2 s[16:17], s[0:1], 128    ; ws
    s_load_dwordx2 s[38:39], s[0:1], 112    ; out
    v_lshrrev_b32 v1, 6, v0
    v_and_b32 v2, 63, v0                    ; lane
    s_nop 0
    v_readfirstlane_b32 s3, v1
    s_and_b32 s18, s2, 7
    s_mul_i32 s18, s18, 10
    s_lshr_b32 s19, s2, 3
    s_add_u32 s18, s18, s19                 ; slice
    s_waitcnt lgkmcnt(0)""")
    srd(a, 8, 4, 1966080)
    srd(a, 12, 16, WS_SIZE)
    srd(a, 44, 38, 2621440)
    load_key(a, 56, 20)
    a(f"""    s_movk_i32 s21, 1280
    v_mul_lo_u32 v4, v0, s21
    s_lshl_b32 s22, s18, 4
    v_lshlrev_b32 v5, 2, v0
    s_mov_b32 s23, {GU_OFF}""")
    for k in range(6):
        a(f"    buffer_load_dwordx4 v[{8+4*k}:{11+4*k}], v4, s[8:11], s22 offen")
        if k < 5:
            a(f"    s_add_u32 s22, s22, {256*1280}")
    for k in range(6):
        if k < 4:
            a(f"    buffer_load_dword v{32+k}, v5, s[12:15], s23 offen offset:{1024*k}")
        else:
            if k == 4:
                a("    s_add_u32 s23, s23, 4096")
            a(f"    buffer_load_dword v{32+k}, v5, s[12:15], s23 offen offset:{1024*(k-4)}")
    a("    s_waitcnt vmcnt(12)")
    reduce_key(a, 56, 20)
    a(f"""    s_and_b32 s21, s20, 0xffff
    s_sub_u32 s21, 0xffff, s21              ; token
    s_lshr_b32 s24, s21, 3                  ; slot
    s_mul_i32 s24, s24, 2560
    s_add_u32 s24, s24, {CH_OFF}
    s_lshl_b32 s25, s18, 4
    s_add_u32 s24, s24, s25
    v_and_b32 v6, 7, v0
    v_lshlrev_b32 v6, 1, v6
    buffer_load_ushort v60, v6, s[12:15], s24 offen
    buffer_load_ushort v61, v6, s[12:15], s24 offen offset:1280
    s_lshr_b32 s26, s20, 16
    s_xor_b32 s27, s26, 0xffff
    s_and_b32 s28, s26, 0x7fff
    s_bitcmp1_b32 s26, 15
    s_cselect_b32 s26, s28, s27
    s_lshl_b32 s26, s26, 16                 ; r as f32
    s_mul_i32 s21, s21, 1280
    s_add_u32 s21, s21, s25
    s_waitcnt vmcnt(2)""")
    for k in range(6):
        for p in range(4):
            a(f"    v_lshlrev_b32 v52, 16, v{8+4*k+p}")
            a(f"    v_and_b32 v53, 0xffff0000, v{8+4*k+p}")
            if k == 0:
                a(f"    v_mul_f32 v{40+2*p}, v{32+k}, v52")
                a(f"    v_mul_f32 v{41+2*p}, v{32+k}, v53")
            else:
                a(f"    v_fmac_f32 v{40+2*p}, v{32+k}, v52")
                a(f"    v_fmac_f32 v{41+2*p}, v{32+k}, v53")
    dpp_reduce(a, list(range(40, 48)))
    a("""    s_lshl_b32 s22, s3, 5
    v_mov_b32 v48, s22
    v_cmp_eq_u32 vcc, 63, v2
    s_and_saveexec_b64 s[30:31], vcc
    ds_write_b128 v48, v[40:43]
    ds_write_b128 v48, v[44:47] offset:16
    s_mov_b64 exec, s[30:31]
    s_waitcnt lgkmcnt(0)
    s_barrier
    v_cmp_gt_u32 vcc, 8, v0
    s_and_saveexec_b64 s[30:31], vcc
    s_cbranch_execz L_k5_done
    v_lshlrev_b32 v48, 2, v0
    ds_read_b32 v49, v48
    ds_read_b32 v50, v48 offset:32
    ds_read_b32 v51, v48 offset:64
    ds_read_b32 v52, v48 offset:96
    v_mov_b32 v53, s26
    v_mul_f32 v53, 0xbfb8aa3b, v53
    v_exp_f32 v53, v53
    s_nop 0
    v_add_f32 v53, 1.0, v53
    v_rcp_f32 v53, v53
    s_waitcnt vmcnt(0) lgkmcnt(0)
    v_add_f32 v49, v49, v50
    v_add_f32 v51, v51, v52
    v_add_f32 v49, v49, v51                 ; y""")
    round_bf16_pair(a, 54, 49, 53)
    a("""    v_mul_f32 v49, v49, v53
    v_cvt_pk_bf16_f32 v49, v49, v49
    v_lshlrev_b32 v49, 16, v49              ; y2
    v_lshlrev_b32 v60, 16, v60              ; h
    v_lshlrev_b32 v61, 16, v61              ; ln
    v_add_f32 v49, v49, v61
    v_cvt_pk_bf16_f32 v49, v49, v49
    v_lshlrev_b32 v49, 16, v49
    v_add_f32 v49, v49, v60
    v_cvt_pk_bf16_f32 v49, v49, v49
    buffer_store_short v49, v6, s[44:47], s21 offen
L_k5_done:
    s_endpgm""")

if __name__ == "__main__":
    out = sys.argv[1] if len(sys.argv) > 1 else "sequential_preLN__ssm_conv_s4__moe_arch_mod__prompt.s"
    open(out, "w").write(gen())
    print("wrote", out)
```

```python
import sys, os
from gen import (Asm, header, desc, srd, dpp_reduce, round_bf16_pair, stats, INV640, EPS, LOG2E, INV2PI,
                 k3, k4, k5, YB_OFF, YBS, CK_OFF, CH_OFF, GU_OFF, WS_SIZE, ST_OFF)

UB_OFF = 0
UBS = 10368
SPLIT = bool(os.environ.get("SPLIT"))
STAMP = bool(os.environ.get("STAMP"))

KRB = 33792
PART = 38400
EW = PART + 12288
LDS1 = EW + 64
LX = PART

def ln1_role(a, sc):
    X = [[32 + 10*t + j for j in range(10)] for t in range(2)]
    for t in range(2):
        for k in range(5):
            a(f"    v_lshlrev_b32 v{X[t][2*k]}, 16, v{6+5*t+k}")
            a(f"    v_and_b32 v{X[t][2*k+1]}, 0xffff0000, v{6+5*t+k}")
    vS = [52, 53]; vD = [54, 55]
    sM = [40, 41]; sMB = [42, 43]; sRS = [44, 45]
    stats(a, X, vS, vD, sM, sMB, sRS)
    a(f"""    v_lshlrev_b32 v56, 5, v2                ; lane*32
    s_lshl_b32 s46, s3, 2
    s_add_u32 s46, s46, {LX}
    v_add_u32 v56, s46, v56""")
    for j in range(10):
        k, hh = j // 2, j & 1
        x0, x1 = X[0][j], X[1][j]
        a(f"    v_subrev_f32 v{x0}, s{sMB[0]}, v{x0}")
        a(f"    v_subrev_f32 v{x1}, s{sMB[1]}, v{x1}")
        round_bf16_pair(a, 54, x0, x1)
        a(f"    v_mul_f32 v{x0}, s{sRS[0]}, v{x0}")
        a(f"    v_mul_f32 v{x1}, s{sRS[1]}, v{x1}")
        round_bf16_pair(a, 54, x0, x1)
        a(f"    v_cvt_pk_f16_f32 v{x0}, v{x0}, v{x1}")
        a(f"    ds_write_b32 v56, v{x0} offset:{2048*k+16*hh}")
    a(f"""    v_lshlrev_b32 v57, 4, v0                ; tid*16
    s_mul_i32 s46, s2, {UBS}
    s_add_u32 s46, s46, {UB_OFF}
    s_add_u32 s47, s46, 8192
    s_add_u32 s39, s46, 4096
    s_waitcnt lgkmcnt(0)
    s_barrier
    ds_read_b128 v[32:35], v57 offset:{LX}
    ds_read_b128 v[36:39], v57 offset:{LX+4096}
    v_cmp_gt_u32 vcc, 128, v0
    s_waitcnt lgkmcnt(0)
    buffer_store_dwordx4 v[32:35], v57, s[12:15], s46 offen {sc}
    buffer_store_dwordx4 v[36:39], v57, s[12:15], s39 offen {sc}
    s_cmp_ge_u32 s3, 2
    s_cbranch_scc1 L_ln1_skip3
    ds_read_b128 v[40:43], v57 offset:{LX+8192}
    s_waitcnt lgkmcnt(0)
    buffer_store_dwordx4 v[40:43], v57, s[12:15], s47 offen {sc}
L_ln1_skip3:""")

def kln1(a):
    header(a, "ln1_kernel")
    a("""    s_cmp_ge_u32 s2, 256
    s_cbranch_scc1 L_kln1_done
    s_load_dwordx2 s[4:5], s[0:1], 0        ; A_u
    s_load_dwordx2 s[6:7], s[0:1], 128      ; ws
    v_lshrrev_b32 v1, 6, v0
    v_and_b32 v2, 63, v0                    ; lane
    s_nop 0
    v_readfirstlane_b32 s3, v1
    s_waitcnt lgkmcnt(0)""")
    srd(a, 8, 4, 2621440)
    srd(a, 12, 6, WS_SIZE)
    a("""    s_lshl_b32 s16, s2, 3
    s_lshl_b32 s17, s3, 1
    s_add_u32 s16, s16, s17                 ; t0
    s_mul_i32 s17, s16, 1280
    v_lshlrev_b32 v3, 2, v2""")
    for t in range(2):
        for k in range(5):
            a(f"    buffer_load_dword v{6+5*t+k}, v3, s[8:11], s17 offen offset:{t*1280+256*k}")
    a("    s_waitcnt vmcnt(0)")
    ln1_role(a, "")
    a("L_kln1_done:\n    s_endpgm")

def cmul_cvt(a, dst, xr, xi, gr, gi, t0, t1, negim):
    a(f"""    v_mul_f32 v{t0}, v{xi}, v{gi}
    v_mul_f32 v{t1}, v{xi}, v{gr}
    v_fma_f32 v{t0}, v{xr}, v{gr}, -v{t0}
    v_fma_f32 v{t1}, v{xr}, v{gi}, v{t1}
    v_cvt_pk_f16_f32 v{dst}, v{t0}, {'-' if negim else ''}v{t1}""")

def csq(a, dr, di, xr, xi, t):
    a(f"""    v_mul_f32 v{t}, v{xi}, v{xi}
    v_mul_f32 v{di}, v{xr}, v{xi}
    v_fma_f32 v{dr}, v{xr}, v{xr}, -v{t}
    v_add_f32 v{di}, v{di}, v{di}""")

def main1(a):
    header(a, "main1_kernel")
    a("""    s_cmp_ge_u32 s2, 640
    s_cbranch_scc1 L_m1_done""")
    if STAMP: a("    s_memrealtime s[80:81]")
    a("""    s_load_dwordx4 s[48:51], s[0:1], 8
    s_load_dwordx4 s[52:55], s[0:1], 24
    s_load_dwordx4 s[56:59], s[0:1], 40
    s_load_dwordx4 s[60:63], s[0:1], 56
    s_load_dwordx2 s[4:5], s[0:1], 0        ; A_u
    s_load_dwordx4 s[64:67], s[0:1], 120
    v_lshrrev_b32 v1, 6, v0
    v_and_b32 v2, 63, v0                    ; lane
    s_nop 0
    v_readfirstlane_b32 s3, v1
    v_min_u32 v3, 47, v2
    s_mul_i32 s20, s2, 384
    s_mul_i32 s21, s3, 96
    s_add_u32 s20, s20, s21
    v_lshlrev_b32 v3, 1, v3
    v_add_u32 v3, s20, v3
    s_lshl_b32 s21, s2, 1
    v_mov_b32 v4, s21
    s_and_b32 s22, s21, 0xfffffffc
    s_waitcnt lgkmcnt(0)""")
    srd(a, 8, 4, 2621440)
    srd(a, 12, 66, WS_SIZE)
    srd(a, 16, 64, 256)
    a("    s_load_dword s68, s[62:63], s22")
    if not SPLIT:
        a("""    s_cmp_ge_u32 s2, 256
    s_cbranch_scc1 L_m1_nox
    s_lshl_b32 s23, s2, 3
    s_lshl_b32 s24, s3, 1
    s_add_u32 s23, s23, s24                 ; t0
    s_mul_i32 s23, s23, 1280
    v_lshlrev_b32 v5, 2, v2""")
        for t in range(2):
            for k in range(5):
                a(f"    buffer_load_dword v{6+5*t+k}, v5, s[8:11], s23 offen offset:{t*1280+256*k}")
        a("L_m1_nox:")
    a("""    global_load_ushort v20, v3, s[48:49]
    global_load_ushort v21, v3, s[50:51]
    global_load_ushort v22, v3, s[52:53]
    global_load_ushort v23, v3, s[54:55]
    global_load_ushort v24, v3, s[56:57]
    global_load_ushort v25, v3, s[58:59]
    global_load_ushort v26, v4, s[60:61]""")
    if not SPLIT:
        a("""    s_cmp_ge_u32 s2, 256
    s_cbranch_scc1 L_m1_noln1
    s_setprio 3
    s_waitcnt vmcnt(7)""")
        ln1_role(a, "sc1")
        a("""    s_waitcnt vmcnt(0)
    s_barrier
    s_setprio 0
    s_cmp_lg_u32 s3, 0
    s_cbranch_scc1 L_m1_noln1
    v_mov_b32 v56, 1
    v_mov_b32 v57, s2
    v_cmp_eq_u32 vcc, 0, v2
    s_and_saveexec_b64 s[46:47], vcc
    buffer_store_byte v56, v57, s[16:19], 0 offen sc1
    s_mov_b64 exec, s[46:47]
L_m1_noln1:""")
    a("""    v_and_b32 v12, 15, v2                   ; rho
    v_lshrrev_b32 v13, 4, v2                ; g
    v_cvt_f32_u32 v14, v12
    s_lshl_b32 s30, s3, 12
    v_and_b32 v15, 7, v2
    v_mul_u32_u24 v16, 240, v15
    v_add_u32 v17, 240, v16
    v_add_u32 v18, 304, v16                 ; v>=3: 304+240v -> 1024...
    v_cmp_lt_u32 vcc, 2, v15
    v_mov_b32 v19, 256
    v_lshrrev_b32 v27, 3, v2                ; lane>>3
    v_cndmask_b32 v17, v17, v18, vcc
    v_cmp_eq_u32 vcc, 0, v15
    v_lshlrev_b32 v27, 4, v27
    v_add_u32 v27, s30, v27
    v_cndmask_b32 v17, v17, v19, vcc
    v_cvt_f32_u32 v15, v17                  ; lG
    v_lshlrev_b32 v28, 3, v2
    v_add_u32 v28, s30, v28
    v_lshlrev_b32 v29, 4, v2
    v_add_u32 v29, s30, v29
    v_lshlrev_b32 v30, 6, v13
    v_add_u32 v30, s30, v30                 ; params: + (16q+4g+i)*16
    v_lshrrev_b32 v16, 2, v12               ; rho>>2 : 0,0,.. 1.. 2 3
    v_subrev_u32 v16, 1, v16
    v_max_i32 v16, 0, v16                   ; 0,0,1,2
    v_lshrrev_b32 v17, 1, v12
    v_add_u32 v17, 3, v17
    v_min_u32 v17, 7, v17
    v_lshlrev_b32 v18, 8, v13               ; g*4 n * 64B
    v_add_u32 v18, s30, v18
    v_lshl_add_u32 v31, v16, 3, v18         ; G1 addr (+1024 + (16q+i)*64)
    v_lshl_add_u32 v16, v17, 3, v18         ; G2 addr
    v_cmp_gt_u32 s[36:37], 8, v12
    s_waitcnt vmcnt(0)""")
    if STAMP: a("    s_memrealtime s[92:93]")
    a("""    v_lshlrev_b32 v20, 16, v20
    v_lshlrev_b32 v21, 16, v21
    v_lshlrev_b32 v22, 16, v22
    v_lshlrev_b32 v23, 16, v23
    v_lshlrev_b32 v24, 16, v24
    v_lshlrev_b32 v25, 16, v25
    v_lshlrev_b32 v26, 16, v26""")
    a(f"""    v_mul_f32 v26, {LOG2E}, v26
    v_exp_f32 v26, v26
    s_nop 0
    v_cvt_pk_bf16_f32 v26, v26, v26
    v_lshlrev_b32 v26, 16, v26
    v_mul_f32 v32, v26, v20                 ; ar
    v_mul_f32 v33, v26, v21                 ; ai
    v_mul_f32 v32, {LOG2E}, v32             ; ar2
    v_mul_f32 v33, {INV2PI}, v33            ; ai2
    v_mul_f32 v22, v26, v22                 ; dBr
    v_mul_f32 v23, v26, v23                 ; dBi
    v_rndne_f32 v20, v33
    v_mul_f32 v34, v25, v23                 ; Ci*dBi
    v_mul_f32 v35, v25, v22                 ; Ci*dBr
    v_sub_f32 v33, v33, v20
    v_fma_f32 v34, v24, v22, -v34           ; cr
    v_fma_f32 v35, v24, v23, v35            ; ci
    v_max_f32 v20, abs(v34), abs(v35)""")
    dpp_reduce(a, [20], op="v_max_f32")
    a(f"""    s_nop 0
    v_frexp_exp_i32_f32 v20, v20
    s_nop 0
    v_readlane_b32 s23, v20, 63             ; e
    s_nop 3
    s_sub_u32 s28, 127, s23
    s_lshl_b32 s28, s28, 23                 ; 2^-e
    s_add_u32 s29, 127, s23
    s_lshl_b32 s29, s29, 23                 ; 2^e
    v_mul_f32 v34, s28, v34
    v_mul_f32 v35, s28, v35
    v_mov_b32 v20, s23
    s_lshl_b32 s31, s3, 2
    s_add_u32 s31, s31, {EW}
    v_mov_b32 v21, s31
    ds_write_b128 v29, v[32:35]
    ds_write_b32 v21, v20
    s_waitcnt lgkmcnt(0)""")
    for k in range(6):
        a(f"    ds_read_b64 v[{32+2*k}:{33+2*k}], v27 offset:{128*k}")
    for r in range(80, 92):
        a(f"    v_mov_b32 v{r}, 0")
    for k in range(6):
        a(f"    s_waitcnt lgkmcnt({5-k})")
        a(f"""    v_mul_f32 v{32+2*k}, v{32+2*k}, v15
    v_mul_f32 v{33+2*k}, v{33+2*k}, v15""")
    for k in range(6):
        a(f"""    v_exp_f32 v{32+2*k}, v{32+2*k}
    v_fract_f32 v{33+2*k}, v{33+2*k}""")
    for k in range(6):
        a(f"""    v_cos_f32 v{44+2*k}, v{33+2*k}
    v_sin_f32 v{45+2*k}, v{33+2*k}""")
    for k in range(6):
        a(f"""    v_mul_f32 v{44+2*k}, v{32+2*k}, v{44+2*k}
    v_mul_f32 v{45+2*k}, v{32+2*k}, v{45+2*k}
    ds_write_b64 v28, v[{44+2*k}:{45+2*k}] offset:{1024+512*k}""")
    a("    s_waitcnt lgkmcnt(0)")
    if STAMP: a("    s_memrealtime s[94:95]\n    s_waitcnt lgkmcnt(0)")
    a("    s_mov_b32 s34, 0\nL_m1_kq:")
    for q in range(1):
        for i in range(4):
            P = 32 + 8*i
            a(f"    ds_read_b128 v[{P}:{P+3}], v30 offset:{256*q + 16*i}")
            a(f"    ds_read_b64 v[{P+4}:{P+5}], v31 offset:{1024 + (16*q+i)*64}")
            a(f"    ds_read_b64 v[{P+6}:{P+7}], v16 offset:{1024 + (16*q+i)*64}")
        for ip in range(2):
            ns = [2*ip, 2*ip+1]
            a(f"    s_waitcnt lgkmcnt({6-6*ip})")
            Z = {ns[0]: (92, 93), ns[1]: (94, 95)}
            for i in ns:
                P = 32 + 8*i; zr, zi = Z[i]
                a(f"    v_mul_f32 v{zr}, v{P}, v14")
                a(f"    v_mul_f32 v{zi}, v{P+1}, v14")
            for i in ns:
                zr, zi = Z[i]; P = 32 + 8*i
                a(f"    v_exp_f32 v{zr}, v{zr}")
                a(f"    v_cos_f32 v{P}, v{zi}")
                a(f"    v_sin_f32 v{P+1}, v{zi}")
            for i in ns:
                zr, zi = Z[i]; P = 32 + 8*i
                a(f"    v_mul_f32 v{zi}, v{zr}, v{P+1}")
                a(f"    v_mul_f32 v{zr}, v{zr}, v{P}")
            for i in ns:
                zr, zi = Z[i]; P = 32 + 8*i
                a(f"    v_cvt_pk_f16_f32 v{64+i}, v{zr}, -v{zi}")
                csq(a, 96, 97, zr, zi, 104)
                csq(a, 98, 99, 96, 97, 104)
                csq(a, 100, 101, 98, 99, 104)
                a(f"    v_cndmask_b32 v96, v98, v96, s[36:37]")
                a(f"    v_cndmask_b32 v97, v99, v97, s[36:37]")
                csq(a, 102, 103, 100, 101, 104)
                cmul_cvt(a, 68+i, 96, 97, P+4, P+5, 104, 105, True)
                cmul_cvt(a, 72+i, 100, 101, P+6, P+7, 104, 105, True)
                cmul_cvt(a, 76+i, 102, 103, P+2, P+3, 104, 105, False)
        a("    s_nop 1")
        for T in range(3):
            a(f"    v_mfma_f32_16x16x32_f16 v[{80+4*T}:{83+4*T}], v[{64+4*T}:{67+4*T}], v[76:79], v[{80+4*T}:{83+4*T}]")
    a("""    v_add_u32 v30, 256, v30
    v_add_u32 v31, 1024, v31
    v_add_u32 v16, 1024, v16
    s_add_u32 s34, s34, 1
    s_cmp_lt_u32 s34, 3
    s_cbranch_scc1 L_m1_kq""")
    a(f"""    s_mul_i32 s31, s3, 3072
    s_add_u32 s31, s31, {PART}
    v_lshlrev_b32 v32, 6, v12
    v_lshl_add_u32 v32, v13, 4, v32
    v_add_u32 v32, s31, v32
    v_lshlrev_b32 v33, 5, v12
    v_lshl_add_u32 v33, v13, 4, v33
    v_add_u32 v33, 1024, v33
    v_lshlrev_b32 v34, 4, v12
    v_lshl_add_u32 v34, v13, 8, v34
    v_add_u32 v34, 1024, v34
    v_cmp_gt_u32 vcc, 2, v13
    v_lshlrev_b32 v35, 3, v12
    v_lshl_add_u32 v35, v13, 8, v35
    v_add_u32 v35, 2048, v35
    v_lshlrev_b32 v36, 3, v2
    v_add_u32 v36, 2304, v36
    v_cndmask_b32 v33, v34, v33, vcc
    v_cndmask_b32 v35, v36, v35, vcc
    v_add_u32 v33, s31, v33
    v_add_u32 v35, s31, v35""")
    for r in range(80, 92):
        a(f"    v_mul_f32 v{r}, s29, v{r}")
    a(f"""    ds_write_b128 v32, v[80:83]
    ds_write_b128 v33, v[84:87]
    ds_write_b64 v35, v[88:89]
    ds_write_b64 v35, v[90:91] offset:128""")
    if STAMP: a("    s_memrealtime s[82:83]")
    a(f"""    s_mov_b32 s24, s66
    s_mov_b32 s25, s67
    s_add_u32 s24, s24, {UB_OFF}
    s_addc_u32 s25, s25, 0
    s_mov_b32 s26, {257*UBS}
    s_mov_b32 s27, 0x00020000
    v_subrev_u32 v37, 1, v0                 ; m = tid-1
    s_mov_b32 s32, {UBS}
    v_mul_lo_u32 v37, v37, s32
    s_lshl_b32 s32, s2, 4
    v_add_u32 v37, s32, v37
    v_add_u32 v38, {UBS}, v37""")
    if not SPLIT:
        a("""    s_cmp_lg_u32 s3, 0
    s_cbranch_scc1 L_m1_ready
    v_lshlrev_b32 v39, 2, v2
    s_mov_b32 s33, 0x01010101
L_m1_poll:
    buffer_load_dword v40, v39, s[16:19], 0 offen sc1
    s_waitcnt vmcnt(0)
    v_cmp_ne_u32 vcc, s33, v40
    s_nop 1
    s_cmp_eq_u64 vcc, 0
    s_cbranch_scc1 L_m1_ready
    s_sleep 8
    s_branch L_m1_poll
L_m1_ready:""")
    sc = "" if SPLIT else "sc1"
    if STAMP: a("    s_memrealtime s[90:91]")
    a(f"""    v_mov_b32 v106, v37
    v_mov_b32 v107, v38""")
    a(f"""    v_lshlrev_b32 v37, 3, v0
    v_sub_u32 v37, 2047, v37                ; x0 = 2047-8tid
    v_cmp_le_u32 vcc, 240, v0""")
    for i in range(8):
        a(f"    v_subrev_u32 v{40+i}, {i}, v37")
    for i in range(8):
        a(f"    v_cvt_f32_u32 v{48+i}, v{40+i}")
    for i in range(0, 8, 2):
        a(f"    v_cvt_pk_bf16_f32 v{56+i//2}, v{48+i}, v{49+i}")
    for i in range(0, 8, 2):
        a(f"    v_and_b32 v{48+i}, 0xffff, v{56+i//2}")
        a(f"    v_lshrrev_b32 v{49+i}, 16, v{56+i//2}")
    for i in range(8):
        a(f"    v_subrev_u32 v{48+i}, 17024, v{48+i}")
    for i in range(8):
        a(f"    v_cndmask_b32 v{48+i}, v{48+i}, v{40+i}, vcc")
    for i in range(8):
        a(f"    v_lshlrev_b32 v{48+i}, 2, v{48+i}")
    a(f"""    v_mov_b32 v38, {EW}
    s_waitcnt lgkmcnt(0)
    s_barrier
    buffer_load_dwordx4 v[108:111], v106, s[24:27], 0 offen {sc}
    buffer_load_dwordx4 v[112:115], v107, s[24:27], 0 offen {sc}
    ds_read_b128 v[60:63], v38""")
    for i in range(8):
        for w in range(4):
            a(f"    ds_read_b32 v{64+4*i+w}, v{48+i} offset:{PART+3072*w}")
    a(f"""    v_add_u32 v6, 1, v12
    v_and_b32 v7, 7, v6
    v_mul_u32_u24 v7, 4160, v7
    v_lshrrev_b32 v6, 3, v6
    v_add_u32 v6, v6, v13
    v_lshl_add_u32 v7, v6, 4, v7
    s_lshl_b32 s22, s3, 7
    v_add_u32 v7, s22, v7                   ; A base
    v_lshlrev_b32 v8, 5, v12
    v_lshlrev_b32 v9, 4, v13
    v_sub_u32 v8, v9, v8
    s_add_u32 s22, s22, {KRB}
    v_add_u32 v8, s22, v8                   ; B base
    v_lshlrev_b32 v9, 4, v0                 ; 16*tid
    v_mov_b32 v100, 0
    v_mov_b32 v101, 0
    v_mov_b32 v102, 0
    v_mov_b32 v103, 0
    v_min_u32 v10, 8, v2
    v_mul_u32_u24 v10, 4160, v10
    v_cmp_lt_u32 vcc, 7, v2
    v_min_u32 v11, 31, v0
    v_lshlrev_b32 v11, 4, v11
    v_cndmask_b32 v10, v10, 16, vcc
    s_waitcnt lgkmcnt(0)""")
    for i in range(8):
        b = 64 + 4*i
        a(f"    v_add_f32 v{b}, v{b}, v{b+1}")
        a(f"    v_add_f32 v{b+2}, v{b+2}, v{b+3}")
    for i in range(8):
        b = 64 + 4*i
        a(f"    v_add_f32 v{40+i}, v{b}, v{b+2}")
    a(f"""    v_max_i32 v60, v60, v61
    v_max_i32 v62, v62, v63
    v_max_i32 v60, v60, v62
    v_max_i32 v60, -100, v60
    v_min_i32 v60, 100, v60                 ; E
    v_sub_u32 v61, 133, v60
    v_lshlrev_b32 v61, 23, v61              ; 2^(6-E)
    v_add_u32 v5, 121, v60
    v_lshlrev_b32 v5, 23, v5""")
    for i in range(8):
        a(f"    v_mul_f32 v{40+i}, v61, v{40+i}")
    for i in range(0, 8, 2):
        a(f"    v_cvt_pk_f16_f32 v{48+i//2}, v{40+i}, v{41+i}")
    a(f"""    ds_write_b128 v9, v[48:51] offset:{KRB}
    ds_write_b128 v11, v[100:103] offset:{KRB+4096}
    ds_write_b128 v10, v[100:103]""")
    ACC = 16; AF = 48; BF = 80
    for r in range(32):
        a(f"    v_mov_b32 v{ACC+r}, 0")
    a("    s_waitcnt vmcnt(0)")
    if STAMP: a("    s_memrealtime s[84:85]")
    D = list(range(108, 116))
    a(f"    ds_write_b128 v9, v[112:115] offset:32")
    a(f"    ds_write_b128 v9, v[110:113] offset:{4160*4+16}")
    for k in range(6):
        a(f"    v_mov_b32 v{48+k}, v{D[1+k]}")
    for k in range(6):
        a(f"    v_alignbit_b32 v{56+k}, v{D[k+1]}, v{D[k]}, 16")
    for k in range(6):
        a(f"    v_alignbit_b32 v{64+k}, v{D[k+2]}, v{D[k+1]}, 16")
    a(f"""    ds_write_b128 v9, v[48:51] offset:{4160*2+16}
    ds_write_b128 v9, v[50:53] offset:{4160*6+16}
    ds_write_b128 v9, v[56:59] offset:{4160*1+16}
    ds_write_b128 v9, v[58:61] offset:{4160*5+16}
    ds_write_b128 v9, v[64:67] offset:{4160*3+16}
    ds_write_b128 v9, v[66:69] offset:{4160*7+16}
    s_waitcnt lgkmcnt(0)
    s_barrier""")
    a("    s_mov_b32 s34, 0\nL_m1_res:")
    for res in range(1):
        for q in range(8):
            a(f"    ds_read_b128 v[{AF+4*q}:{AF+4*q+3}], v7 offset:{512*q+64*res}")
        a(f"    ds_read_b128 v[{BF}:{BF+3}], v8 offset:{4064+64*res}")
        for v in range(8):
            cur = BF + 4*(v & 1); nxt = BF + 4*((v+1) & 1)
            if v < 7:
                a(f"    ds_read_b128 v[{nxt}:{nxt+3}], v8 offset:{4064-512*(v+1)+64*res}")
                a("    s_waitcnt lgkmcnt(1)")
            else:
                a("    s_waitcnt lgkmcnt(0)")
            for q in range(8 - v):
                t = q + v
                a(f"    v_mfma_f32_16x16x32_f16 v[{ACC+4*t}:{ACC+4*t+3}], v[{AF+4*q}:{AF+4*q+3}], v[{cur}:{cur+3}], v[{ACC+4*t}:{ACC+4*t+3}]")
    a("""    v_add_u32 v7, 64, v7
    v_add_u32 v8, 64, v8
    s_add_u32 s34, s34, 1
    s_cmp_lt_u32 s34, 2
    s_cbranch_scc1 L_m1_res""")
    a(f"""    s_lshl_b32 s22, s3, 13
    v_lshlrev_b32 v10, 6, v12
    v_lshl_add_u32 v10, v13, 4, v10
    v_add_u32 v10, s22, v10
    v_lshlrev_b32 v11, 5, v0
    s_nop 4
    s_barrier""")
    if STAMP: a("    s_memrealtime s[86:87]")
    for t in range(8):
        a(f"    ds_write_b128 v10, v[{ACC+4*t}:{ACC+4*t+3}] offset:{1024*t}")
    a("""    s_waitcnt lgkmcnt(0)
    s_barrier""")
    for w in range(4):
        for hf in range(2):
            a(f"    ds_read_b128 v[{ACC+8*w+4*hf}:{ACC+8*w+4*hf+3}], v11 offset:{8192*w+16*hf}")
    a("""    s_bitcmp1_b32 s2, 0
    s_cbranch_scc1 L_m1_odd
    s_lshl_b32 s68, s68, 16
L_m1_odd:
    s_and_b32 s68, s68, 0xffff0000""")
    for i in range(4):
        a(f"    v_cvt_f32_f16 v{48+2*i}, v{112+i}")
        a(f"    v_cvt_f32_f16_sdwa v{49+2*i}, v{112+i} dst_sel:DWORD dst_unused:UNUSED_PAD src0_sel:WORD_1")
    for i in range(8):
        a(f"    v_mul_f32 v{48+i}, s68, v{48+i}")
    for i in range(0, 8, 2):
        round_bf16_pair(a, 56, 48+i, 49+i)
    a("    s_waitcnt lgkmcnt(0)")
    for i in range(8):
        a(f"    v_add_f32 v{ACC+i}, v{ACC+i}, v{ACC+8+i}")
        a(f"    v_add_f32 v{ACC+16+i}, v{ACC+16+i}, v{ACC+24+i}")
    for i in range(8):
        a(f"    v_add_f32 v{ACC+i}, v{ACC+i}, v{ACC+16+i}")
    for i in range(8):
        a(f"    v_mul_f32 v{ACC+i}, v5, v{ACC+i}")
    for i in range(0, 8, 2):
        round_bf16_pair(a, 56, ACC+i, ACC+i+1)
    for i in range(8):
        a(f"    v_add_f32 v{ACC+i}, v{ACC+i}, v{48+i}")
    for i in range(0, 8, 2):
        a(f"    v_cvt_pk_bf16_f32 v{60+i//2}, v{ACC+i}, v{ACC+i+1}")
    a(f"""    s_mov_b32 s22, {YBS}
    v_mul_lo_u32 v12, v0, s22
    s_lshl_b32 s23, s2, 4
    s_add_u32 s23, s23, {YB_OFF}
    buffer_store_dwordx4 v[60:63], v12, s[12:15], s23 offen""")
    if STAMP:
        a(f"""    s_memrealtime s[88:89]
    s_waitcnt lgkmcnt(0)
    v_mov_b32 v60, s80
    v_mov_b32 v61, s82
    v_mov_b32 v62, s84
    v_mov_b32 v63, s86
    v_mov_b32 v64, s88
    v_mov_b32 v65, s90
    v_mov_b32 v66, s92
    v_mov_b32 v67, s94
    s_lshl_b32 s23, s2, 7
    s_lshl_b32 s22, s3, 5
    s_add_u32 s23, s23, s22
    s_add_u32 s23, s23, {ST_OFF}
    v_mov_b32 v12, 0
    buffer_store_dwordx4 v[60:63], v12, s[12:15], s23 offen
    buffer_store_dwordx4 v[64:67], v12, s[12:15], s23 offen offset:16""")
    a("""L_m1_done:
    s_endpgm""")

def gen():
    a = Asm()
    if SPLIT:
        a(f"; @launch kernel=ln1_kernel grid=(256,1,1) block=(256,1,1) lds={LDS1}")
    a(f"; @launch kernel=main1_kernel grid=(640,1,1) block=(256,1,1) lds={LDS1}")
    a("; @launch kernel=ln2_kernel grid=(256,1,1) block=(256,1,1) lds=64")
    a("; @launch kernel=ffn1_kernel grid=(192,1,1) block=(256,1,1) lds=256")
    a("; @launch kernel=ffn2_kernel grid=(80,1,1) block=(256,1,1) lds=256")
    a('.amdgcn_target "amdgcn-amd-amdhsa--gfx950"\n.text')
    if SPLIT: kln1(a)
    main1(a); k3(a); k4(a); k5(a)
    a('.section .rodata,"a"')
    if SPLIT: a(desc("ln1_kernel", 64))
    a(desc("main1_kernel", 116))
    a(desc("ln2_kernel", 80))
    a(desc("ffn1_kernel", 64))
    a(desc("ffn2_kernel", 64))
    return a.text()

if __name__ == "__main__":
    out = sys.argv[1] if len(sys.argv) > 1 else "sequential_preLN__ssm_conv_s4__moe_arch_mod__prompt.s"
    open(out, "w").write(gen())
    print("wrote", out)
```

```python
import sys, os
from gen import (Asm, header, desc, srd, dpp_reduce, round_bf16_pair, stats, INV640, EPS, LOG2E, INV2PI,
                 k3, k4, k5, YB_OFF, YBS, CK_OFF, CH_OFF, GU_OFF, WS_SIZE, ST_OFF)
import gen2
from gen2 import UB_OFF, UBS
STAMP = bool(os.environ.get("STAMP"))
gen2.LX = 0

G2_OFF = 0x1000000
W2_OFF = 0x1400000
KRB = 33792
PART = 38400
EW = PART + 12288
KT = EW + 64
LDS1 = KT + 1536

def main1(a):
    header(a, "main1_kernel")
    a("""    s_cmp_ge_u32 s2, 640
    s_cbranch_scc1 L_m1_done
    s_and_b32 s16, s2, 7
    s_mul_i32 s16, s16, 80
    s_lshr_b32 s2, s2, 3
    s_add_u32 s2, s2, s16""")
    if STAMP: a("    s_memrealtime s[80:81]")
    a(f"""    s_load_dwordx4 s[48:51], s[0:1], 8
    s_load_dwordx4 s[52:55], s[0:1], 24
    s_load_dwordx4 s[56:59], s[0:1], 40
    s_load_dwordx4 s[60:63], s[0:1], 56
    s_load_dwordx2 s[66:67], s[0:1], 128    ; ws
    s_load_dwordx4 s[72:75], s[0:1], 88
    s_load_dwordx2 s[76:77], s[0:1], 104    ; w_down
    v_lshrrev_b32 v1, 6, v0
    v_and_b32 v2, 63, v0                    ; lane
    s_nop 0
    v_readfirstlane_b32 s3, v1
    v_min_u32 v3, 47, v2
    s_mul_i32 s20, s2, 384
    s_mul_i32 s21, s3, 96
    s_add_u32 s20, s20, s21
    v_lshlrev_b32 v3, 1, v3
    v_add_u32 v3, s20, v3
    s_lshl_b32 s21, s2, 1
    v_mov_b32 v4, s21
    s_and_b32 s22, s21, 0xfffffffc
    v_subrev_u32 v5, 1, v0                  ; m = tid-1
    s_mov_b32 s32, {UBS}
    v_mul_lo_u32 v5, v5, s32
    s_lshl_b32 s32, s2, 4
    v_add_u32 v5, s32, v5
    v_add_u32 v6, {UBS}, v5
    s_waitcnt lgkmcnt(0)
    global_load_ushort v20, v3, s[48:49]
    global_load_ushort v21, v3, s[50:51]
    global_load_ushort v22, v3, s[52:53]
    global_load_ushort v23, v3, s[54:55]
    global_load_ushort v24, v3, s[56:57]
    global_load_ushort v25, v3, s[58:59]
    global_load_ushort v26, v4, s[60:61]
    s_mov_b32 s24, s66
    s_mov_b32 s25, s67
    s_add_u32 s24, s24, {UB_OFF}
    s_addc_u32 s25, s25, 0
    s_mov_b32 s26, {257*UBS}
    s_mov_b32 s27, 0x00020000
    buffer_load_dwordx4 v[132:135], v5, s[24:27], 0 offen
    buffer_load_dwordx4 v[136:139], v6, s[24:27], 0 offen
    s_load_dword s68, s[62:63], s22
    v_min_u32 v7, 191, v0
    v_lshlrev_b32 v7, 4, v7
    s_mul_i32 s33, s2, 3072
    v_add_u32 v7, s33, v7
    global_load_dwordx4 v[140:143], v7, s[72:73]
    global_load_dwordx4 v[144:147], v7, s[74:75]
    global_load_dwordx4 v[148:151], v7, s[76:77]""")
    srd(a, 12, 66, WS_SIZE)
    a("""    v_and_b32 v12, 15, v2                   ; rho
    v_lshrrev_b32 v13, 4, v2                ; g
    v_cvt_f32_u32 v14, v12
    s_mul_i32 s30, s3, 5120
    v_and_b32 v15, 7, v2
    v_mul_u32_u24 v16, 240, v15
    v_add_u32 v17, 240, v16
    v_add_u32 v18, 304, v16
    v_cmp_lt_u32 vcc, 2, v15
    v_mov_b32 v19, 256
    v_lshrrev_b32 v27, 3, v2                ; lane>>3
    v_cndmask_b32 v17, v17, v18, vcc
    v_cmp_eq_u32 vcc, 0, v15
    v_lshlrev_b32 v27, 4, v27
    v_add_u32 v27, s30, v27
    v_cndmask_b32 v17, v17, v19, vcc
    v_cvt_f32_u32 v15, v17                  ; lG
    v_lshrrev_b32 v28, 3, v2
    v_mul_u32_u24 v28, 80, v28
    v_and_b32 v29, 7, v2
    v_lshl_add_u32 v28, v29, 3, v28
    v_add_u32 v28, s30, v28
    v_lshlrev_b32 v29, 4, v2
    v_add_u32 v29, s30, v29
    v_lshlrev_b32 v30, 6, v13
    v_add_u32 v30, s30, v30
    v_lshrrev_b32 v16, 2, v12
    v_subrev_u32 v16, 1, v16
    v_max_i32 v16, 0, v16
    v_lshrrev_b32 v17, 1, v12
    v_add_u32 v17, 3, v17
    v_min_u32 v17, 7, v17
    v_mul_u32_u24 v18, 320, v13
    v_add_u32 v18, s30, v18
    v_lshl_add_u32 v31, v16, 3, v18         ; G1 addr
    v_lshl_add_u32 v16, v17, 3, v18         ; G2 addr
    v_cmp_gt_u32 s[36:37], 8, v12
    s_waitcnt vmcnt(5) lgkmcnt(0)
    v_lshlrev_b32 v20, 16, v20
    v_lshlrev_b32 v21, 16, v21
    v_lshlrev_b32 v22, 16, v22
    v_lshlrev_b32 v23, 16, v23
    v_lshlrev_b32 v24, 16, v24
    v_lshlrev_b32 v25, 16, v25
    v_lshlrev_b32 v26, 16, v26""")
    a(f"""    v_mul_f32 v26, {LOG2E}, v26
    v_exp_f32 v26, v26
    s_nop 0
    v_cvt_pk_bf16_f32 v26, v26, v26
    v_lshlrev_b32 v26, 16, v26
    v_mul_f32 v32, v26, v20                 ; ar
    v_mul_f32 v33, v26, v21                 ; ai
    v_mul_f32 v32, {LOG2E}, v32             ; ar2
    v_mul_f32 v33, {INV2PI}, v33            ; ai2
    v_mul_f32 v22, v26, v22                 ; dBr
    v_mul_f32 v23, v26, v23                 ; dBi
    v_rndne_f32 v20, v33
    v_mul_f32 v34, v25, v23                 ; Ci*dBi
    v_mul_f32 v35, v25, v22                 ; Ci*dBr
    v_sub_f32 v33, v33, v20
    v_fma_f32 v34, v24, v22, -v34           ; cr
    v_fma_f32 v35, v24, v23, v35            ; ci
    ds_write_b64 v29, v[32:33]
    v_max_f32 v20, abs(v34), abs(v35)""")
    a("    s_waitcnt lgkmcnt(0)")
    for k in range(6):
        a(f"    ds_read_b64 v[{36+2*k}:{37+2*k}], v27 offset:{128*k}")
    dpp_reduce(a, [20], op="v_max_f32")
    a(f"""    s_nop 0
    v_frexp_exp_i32_f32 v20, v20
    s_nop 0
    v_readlane_b32 s23, v20, 63             ; e
    s_nop 3
    s_sub_u32 s28, 127, s23
    s_lshl_b32 s28, s28, 23                 ; 2^-e
    s_add_u32 s29, 127, s23
    s_lshl_b32 s29, s29, 23                 ; 2^e
    v_mul_f32 v34, s28, v34
    v_mul_f32 v35, s28, v35
    v_mov_b32 v20, s23
    s_lshl_b32 s31, s3, 2
    s_add_u32 s31, s31, {EW}
    v_mov_b32 v21, s31
    s_waitcnt lgkmcnt(0)
    ds_write_b64 v29, v[34:35] offset:8
    ds_write_b32 v21, v20""")
    for k in range(6):
        a(f"""    v_mul_f32 v{36+2*k}, v{36+2*k}, v15
    v_mul_f32 v{37+2*k}, v{37+2*k}, v15""")
    for k in range(6):
        a(f"""    v_exp_f32 v{36+2*k}, v{36+2*k}
    v_fract_f32 v{37+2*k}, v{37+2*k}""")
    for k in range(6):
        a(f"""    v_cos_f32 v{48+2*k}, v{37+2*k}
    v_sin_f32 v{49+2*k}, v{37+2*k}""")
    for k in range(6):
        a(f"""    v_mul_f32 v{48+2*k}, v{36+2*k}, v{48+2*k}
    v_mul_f32 v{49+2*k}, v{36+2*k}, v{49+2*k}
    ds_write_b64 v28, v[{48+2*k}:{49+2*k}] offset:{1024+640*k}""")
    for r in range(80, 92):
        a(f"    v_mov_b32 v{r}, 0")
    a("    s_waitcnt lgkmcnt(0)")
    if STAMP: a("    s_memrealtime s[90:91]\n    s_waitcnt lgkmcnt(0)")
    a("    s_mov_b32 s34, 0\nL_m1_kq:")
    for i in range(4):
        P = 32 + 8*i
        a(f"    ds_read_b128 v[{P}:{P+3}], v30 offset:{16*i}")
    for i in range(4):
        P = 32 + 8*i
        a(f"    ds_read_b64 v[{P+4}:{P+5}], v31 offset:{1024 + i*80}")
        a(f"    ds_read_b64 v[{P+6}:{P+7}], v16 offset:{1024 + i*80}")
    a("""    v_add_u32 v30, 256, v30
    v_add_u32 v31, 1280, v31
    v_add_u32 v16, 1280, v16""")
    R4 = range(4)
    T = lambda i: 92 + 10*i
    Pn = lambda i: 32 + 8*i
    for i in R4:
        a(f"    s_waitcnt lgkmcnt({11-i})")
        a(f"    v_mul_f32 v{T(i)}, v{Pn(i)}, v14")
        a(f"    v_mul_f32 v{T(i)+1}, v{Pn(i)+1}, v14")
    for i in R4:
        a(f"    v_exp_f32 v{T(i)}, v{T(i)}")
        a(f"    v_cos_f32 v{Pn(i)}, v{T(i)+1}")
        a(f"    v_sin_f32 v{Pn(i)+1}, v{T(i)+1}")
    for i in R4:
        a(f"    v_mul_f32 v{T(i)+1}, v{T(i)}, v{Pn(i)+1}")
        a(f"    v_mul_f32 v{T(i)}, v{T(i)}, v{Pn(i)}")
    def csq4(dst, src):
        for i in R4:
            a(f"    v_mul_f32 v{T(i)+8}, v{T(i)+src+1}, v{T(i)+src+1}")
            a(f"    v_mul_f32 v{T(i)+dst+1}, v{T(i)+src}, v{T(i)+src+1}")
        for i in R4:
            a(f"    v_fma_f32 v{T(i)+dst}, v{T(i)+src}, v{T(i)+src}, -v{T(i)+8}")
            a(f"    v_add_f32 v{T(i)+dst+1}, v{T(i)+dst+1}, v{T(i)+dst+1}")
    def cmul4(dstbase, x, goff, negim):
        for i in R4:
            a(f"    v_mul_f32 v{T(i)+8}, v{T(i)+x+1}, v{Pn(i)+goff+1}")
            a(f"    v_mul_f32 v{T(i)+9}, v{T(i)+x+1}, v{Pn(i)+goff}")
        for i in R4:
            a(f"    v_fma_f32 v{T(i)+8}, v{T(i)+x}, v{Pn(i)+goff}, -v{T(i)+8}")
            a(f"    v_fma_f32 v{T(i)+9}, v{T(i)+x}, v{Pn(i)+goff+1}, v{T(i)+9}")
        for i in R4:
            a(f"    v_cvt_pk_f16_f32 v{dstbase+i}, v{T(i)+8}, {'-' if negim else ''}v{T(i)+9}")
    for i in R4:
        a(f"    v_cvt_pk_f16_f32 v{64+i}, v{T(i)}, -v{T(i)+1}")
    csq4(2, 0); csq4(4, 2); csq4(6, 4)
    for i in R4:
        a(f"    v_cndmask_b32 v{T(i)+2}, v{T(i)+4}, v{T(i)+2}, s[36:37]")
        a(f"    v_cndmask_b32 v{T(i)+3}, v{T(i)+5}, v{T(i)+3}, s[36:37]")
    csq4(0, 6)
    a("    s_waitcnt lgkmcnt(0)")
    cmul4(68, 2, 4, True)
    cmul4(72, 6, 6, True)
    cmul4(76, 0, 2, False)
    a("    s_nop 1")
    for Tt in range(3):
        a(f"    v_mfma_f32_16x16x32_f16 v[{80+4*Tt}:{83+4*Tt}], v[{64+4*Tt}:{67+4*Tt}], v[76:79], v[{80+4*Tt}:{83+4*Tt}]")
    a("""    s_add_u32 s34, s34, 1
    s_cmp_lt_u32 s34, 3
    s_cbranch_scc1 L_m1_kq""")
    a(f"""    s_mul_i32 s31, s3, 3072
    s_add_u32 s31, s31, {PART}
    v_lshlrev_b32 v32, 6, v12
    v_lshl_add_u32 v32, v13, 4, v32
    v_add_u32 v32, s31, v32
    v_lshlrev_b32 v33, 5, v12
    v_lshl_add_u32 v33, v13, 4, v33
    v_add_u32 v33, 1024, v33
    v_lshlrev_b32 v34, 4, v12
    v_lshl_add_u32 v34, v13, 8, v34
    v_add_u32 v34, 1024, v34
    v_cmp_gt_u32 vcc, 2, v13
    v_lshlrev_b32 v35, 3, v12
    v_lshl_add_u32 v35, v13, 8, v35
    v_add_u32 v35, 2048, v35
    v_lshlrev_b32 v36, 3, v2
    v_add_u32 v36, 2304, v36
    v_cndmask_b32 v33, v34, v33, vcc
    v_cndmask_b32 v35, v36, v35, vcc
    v_add_u32 v33, s31, v33
    v_add_u32 v35, s31, v35""")
    for r in range(80, 92):
        a(f"    v_mul_f32 v{r}, s29, v{r}")
    a(f"""    ds_write_b128 v32, v[80:83]
    ds_write_b128 v33, v[84:87]
    ds_write_b64 v35, v[88:89]
    ds_write_b64 v35, v[90:91] offset:128""")
    if STAMP: a("    s_memrealtime s[82:83]")
    a(f"""    v_lshlrev_b32 v37, 3, v0
    v_sub_u32 v37, 2047, v37                ; x0 = 2047-8tid
    v_cmp_le_u32 vcc, 240, v0""")
    for i in range(8):
        a(f"    v_subrev_u32 v{40+i}, {i}, v37")
    for i in range(8):
        a(f"    v_cvt_f32_u32 v{48+i}, v{40+i}")
    for i in range(0, 8, 2):
        a(f"    v_cvt_pk_bf16_f32 v{56+i//2}, v{48+i}, v{49+i}")
    for i in range(0, 8, 2):
        a(f"    v_and_b32 v{48+i}, 0xffff, v{56+i//2}")
        a(f"    v_lshrrev_b32 v{49+i}, 16, v{56+i//2}")
    for i in range(8):
        a(f"    v_subrev_u32 v{48+i}, 17024, v{48+i}")
    for i in range(8):
        a(f"    v_cndmask_b32 v{48+i}, v{48+i}, v{40+i}, vcc")
    for i in range(8):
        a(f"    v_lshlrev_b32 v{48+i}, 1, v{48+i}")
    D = list(range(132, 140))
    a("    s_waitcnt vmcnt(0)")
    for k in range(6):
        a(f"    v_mov_b32 v{100+k}, v{D[1+k]}")
    for k in range(6):
        a(f"    v_alignbit_b32 v{108+k}, v{D[k+1]}, v{D[k]}, 16")
    for k in range(6):
        a(f"    v_alignbit_b32 v{116+k}, v{D[k+2]}, v{D[k+1]}, 16")
    a(f"""    v_mov_b32 v38, {EW}
    v_lshlrev_b32 v9, 4, v0                 ; 16*tid
    v_mov_b32 v124, 0
    v_mov_b32 v125, 0
    v_mov_b32 v126, 0
    v_mov_b32 v127, 0
    v_min_u32 v10, 8, v2
    v_mul_u32_u24 v10, 4160, v10
    v_cmp_lt_u32 vcc, 7, v2
    v_min_u32 v11, 31, v0
    v_lshlrev_b32 v11, 4, v11
    v_cndmask_b32 v10, v10, 16, vcc
    v_min_u32 v39, 191, v0
    v_lshlrev_b32 v37, 3, v39
    v_lshlrev_b32 v39, 4, v39
    s_waitcnt lgkmcnt(0)
    s_barrier
    ds_read_b128 v[60:63], v38""")
    for w in range(4):
        a(f"    ds_read_b128 v[{64+4*w}:{67+4*w}], v39 offset:{PART+3072*w}")
    a(f"""    ds_write_b128 v9, v[136:139] offset:32
    ds_write_b128 v9, v[134:137] offset:{4160*4+16}
    ds_write_b128 v9, v[100:103] offset:{4160*2+16}
    ds_write_b128 v9, v[102:105] offset:{4160*6+16}
    ds_write_b128 v9, v[108:111] offset:{4160*1+16}
    ds_write_b128 v9, v[110:113] offset:{4160*5+16}
    ds_write_b128 v9, v[116:119] offset:{4160*3+16}
    ds_write_b128 v9, v[118:121] offset:{4160*7+16}
    ds_write_b128 v11, v[124:127] offset:{KRB+4096}
    ds_write_b128 v10, v[124:127]
    s_waitcnt lgkmcnt(10)
    v_max_i32 v60, v60, v61
    v_max_i32 v62, v62, v63
    v_max_i32 v60, v60, v62
    v_max_i32 v60, -100, v60
    v_min_i32 v60, 100, v60                 ; E
    v_sub_u32 v61, 133, v60
    v_lshlrev_b32 v61, 23, v61              ; 2^(6-E)
    v_add_u32 v5, 121, v60
    v_lshlrev_b32 v5, 23, v5""")
    for i in range(4):
        a(f"    v_add_f32 v{64+i}, v{64+i}, v{68+i}")
        a(f"    v_add_f32 v{72+i}, v{72+i}, v{76+i}")
    for i in range(4):
        a(f"    v_add_f32 v{64+i}, v{64+i}, v{72+i}")
    for i in range(4):
        a(f"    v_mul_f32 v{64+i}, v61, v{64+i}")
    a(f"""    v_cvt_pk_f16_f32 v68, v64, v65
    v_cvt_pk_f16_f32 v69, v66, v67
    ds_write_b64 v37, v[68:69] offset:{KT}
    v_add_u32 v6, 1, v12
    v_and_b32 v7, 7, v6
    v_mul_u32_u24 v7, 4160, v7
    v_lshrrev_b32 v6, 3, v6
    v_add_u32 v6, v6, v13
    v_lshl_add_u32 v7, v6, 4, v7
    s_lshl_b32 s22, s3, 7
    v_add_u32 v7, s22, v7                   ; A base
    v_lshlrev_b32 v8, 5, v12
    v_lshlrev_b32 v6, 4, v13
    v_sub_u32 v8, v6, v8
    s_add_u32 s22, s22, {KRB}
    v_add_u32 v8, s22, v8                   ; B base
    s_lshl_b32 s22, s3, 13
    v_lshrrev_b32 v14, 1, v13
    v_lshl_add_u32 v14, v14, 3, v12
    v_and_b32 v14, 15, v14
    v_lshl_add_u32 v14, v13, 4, v14
    v_lshlrev_b32 v14, 4, v14
    v_add_u32 v14, s22, v14
    v_and_b32 v6, 1, v0
    v_bfe_u32 v11, v0, 1, 4
    v_lshl_add_u32 v11, v6, 3, v11
    v_and_b32 v11, 15, v11
    v_lshl_add_u32 v11, v6, 5, v11
    v_lshlrev_b32 v11, 4, v11
    v_lshrrev_b32 v6, 5, v0
    v_lshl_add_u32 v11, v6, 10, v11
    s_waitcnt lgkmcnt(0)
    s_barrier""")
    for i in range(8):
        a(f"    ds_read_u16 v{56+i}, v{48+i} offset:{KT}")
    a("    s_waitcnt lgkmcnt(0)")
    for i in range(0, 8, 2):
        a(f"    v_lshl_or_b32 v{40+i//2}, v{57+i}, 16, v{56+i}")
    a(f"    ds_write_b128 v9, v[40:43] offset:{KRB}")
    ACC = 16; AF = 48; BF = 80
    for r in range(32):
        a(f"    v_mov_b32 v{ACC+r}, 0")
    a("""    s_waitcnt lgkmcnt(0)
    s_barrier""")
    if STAMP: a("    s_memrealtime s[84:85]\n    s_waitcnt lgkmcnt(0)")
    a("    s_mov_b32 s34, 0\nL_m1_res:")
    for q in range(8):
        a(f"    ds_read_b128 v[{AF+4*q}:{AF+4*q+3}], v7 offset:{512*q}")
    a(f"    ds_read_b128 v[{BF}:{BF+3}], v8 offset:{4064}")
    for v in range(8):
        cur = BF + 4*(v & 1); nxt = BF + 4*((v+1) & 1)
        if v < 7:
            a(f"    ds_read_b128 v[{nxt}:{nxt+3}], v8 offset:{4064-512*(v+1)}")
            a("    s_waitcnt lgkmcnt(1)")
        else:
            a("    s_waitcnt lgkmcnt(0)")
        for q in range(8 - v):
            t = q + v
            a(f"    v_mfma_f32_16x16x32_f16 v[{ACC+4*t}:{ACC+4*t+3}], v[{AF+4*q}:{AF+4*q+3}], v[{cur}:{cur+3}], v[{ACC+4*t}:{ACC+4*t+3}]")
    a("""    v_add_u32 v7, 64, v7
    v_add_u32 v8, 64, v8
    s_add_u32 s34, s34, 1
    s_cmp_lt_u32 s34, 2
    s_cbranch_scc1 L_m1_res
    s_nop 4
    s_barrier""")
    if STAMP: a("    s_memrealtime s[86:87]")
    for t in range(8):
        a(f"    ds_write_b128 v14, v[{ACC+4*t}:{ACC+4*t+3}] offset:{1024*t}")
    a("""    s_bitcmp1_b32 s2, 0
    s_cbranch_scc1 L_m1_odd
    s_lshl_b32 s68, s68, 16
L_m1_odd:
    s_and_b32 s68, s68, 0xffff0000""")
    for i in range(4):
        a(f"    v_cvt_f32_f16 v{48+2*i}, v{136+i}")
        a(f"    v_cvt_f32_f16_sdwa v{49+2*i}, v{136+i} dst_sel:DWORD dst_unused:UNUSED_PAD src0_sel:WORD_1")
    for i in range(8):
        a(f"    v_mul_f32 v{48+i}, s68, v{48+i}")
    for i in range(0, 8, 2):
        round_bf16_pair(a, 56, 48+i, 49+i)
    a(f"""    s_mov_b32 s22, {YBS}
    v_mul_lo_u32 v12, v0, s22
    s_lshl_b32 s23, s2, 4
    s_add_u32 s23, s23, {YB_OFF}
    s_waitcnt lgkmcnt(0)
    s_barrier""")
    for w in range(4):
        for hf in range(2):
            a(f"    ds_read_b128 v[{ACC+8*w+4*hf}:{ACC+8*w+4*hf+3}], v11 offset:{8192*w+256*hf}")
    a("    s_waitcnt lgkmcnt(0)")
    for i in range(8):
        a(f"    v_add_f32 v{ACC+i}, v{ACC+i}, v{ACC+8+i}")
        a(f"    v_add_f32 v{ACC+16+i}, v{ACC+16+i}, v{ACC+24+i}")
    for i in range(8):
        a(f"    v_add_f32 v{ACC+i}, v{ACC+i}, v{ACC+16+i}")
    for i in range(8):
        a(f"    v_mul_f32 v{ACC+i}, v5, v{ACC+i}")
    for i in range(0, 8, 2):
        round_bf16_pair(a, 56, ACC+i, ACC+i+1)
    for i in range(8):
        a(f"    v_add_f32 v{ACC+i}, v{ACC+i}, v{48+i}")
    for i in range(0, 8, 2):
        a(f"    v_cvt_pk_bf16_f32 v{60+i//2}, v{ACC+i}, v{ACC+i+1}")
    a("    buffer_store_dwordx4 v[60:63], v12, s[12:15], s23 offen")
    if STAMP:
        a(f"""    s_memrealtime s[88:89]
    s_waitcnt lgkmcnt(0)
    v_mov_b32 v60, s80
    v_mov_b32 v61, s82
    v_mov_b32 v62, s84
    v_mov_b32 v63, s86
    v_mov_b32 v64, s88
    v_mov_b32 v65, s90
    s_lshl_b32 s23, s2, 7
    s_lshl_b32 s22, s3, 5
    s_add_u32 s23, s23, s22
    s_add_u32 s23, s23, {ST_OFF}
    v_mov_b32 v12, 0
    buffer_store_dwordx4 v[60:63], v12, s[12:15], s23 offen
    buffer_store_dwordx2 v[64:65], v12, s[12:15], s23 offen offset:16""")
    a("""L_m1_done:
    s_endpgm""")

def gen():
    a = Asm()
    a(f"; @launch kernel=ln1_kernel grid=(256,1,1) block=(256,1,1) lds=10240")
    a(f"; @launch kernel=main1_kernel grid=(640,1,1) block=(256,1,1) lds={LDS1}")
    a("; @launch kernel=ln2_kernel grid=(256,1,1) block=(256,1,1) lds=64")
    a("; @launch kernel=ffn1_kernel grid=(192,1,1) block=(256,1,1) lds=256")
    a("; @launch kernel=ffn2_kernel grid=(80,1,1) block=(256,1,1) lds=256")
    a('.amdgcn_target "amdgcn-amd-amdhsa--gfx950"\n.text')
    gen2.kln1(a); main1(a); k3(a); k4(a); k5(a)
    a('.section .rodata,"a"')
    a(desc("ln1_kernel", 64))
    a(desc("main1_kernel", 140))
    a(desc("ln2_kernel", 80))
    a(desc("ffn1_kernel", 64))
    a(desc("ffn2_kernel", 64))
    return a.text()

if __name__ == "__main__":
    out = sys.argv[1] if len(sys.argv) > 1 else "sequential_preLN__ssm_conv_s4__moe_arch_mod__prompt.s"
    open(out, "w").write(gen())
    print("wrote", out)
```

```python
import sys, os
from gen import (Asm, header, desc, srd, dpp_reduce, round_bf16_pair, stats, INV640, EPS, LOG2E, INV2PI,
                 YB_OFF, YBS, CK_OFF, CH_OFF, GU_OFF, WS_SIZE, ST_OFF)
import gen2, gen4
from gen4 import main1, LDS1, G2_OFF, W2_OFF
STAMP = bool(os.environ.get("STAMP"))
GX_OFF = 0xD10000
gen2.LX = 0

def kln1(a):
    header(a, "ln1_kernel")
    a("""    s_cmp_ge_u32 s2, 256
    s_cbranch_scc1 L_kln1_done
    s_load_dwordx2 s[4:5], s[0:1], 0        ; A_u
    s_load_dwordx2 s[6:7], s[0:1], 128      ; ws
    v_lshrrev_b32 v1, 6, v0
    v_and_b32 v2, 63, v0                    ; lane
    s_nop 0
    v_readfirstlane_b32 s3, v1
    s_waitcnt lgkmcnt(0)""")
    srd(a, 8, 4, 2621440)
    srd(a, 12, 6, WS_SIZE)
    a("""    s_lshl_b32 s16, s2, 3
    s_lshl_b32 s17, s3, 1
    s_add_u32 s16, s16, s17                 ; t0
    s_mul_i32 s17, s16, 1280
    v_lshlrev_b32 v3, 2, v2""")
    for t in range(2):
        for k in range(5):
            a(f"    buffer_load_dword v{6+5*t+k}, v3, s[8:11], s17 offen offset:{t*1280+256*k}")
    a(f"""    s_cmp_ge_u32 s2, 3
    s_cbranch_scc1 L_kln1_noz
    v_mov_b32 v60, 0
    v_mov_b32 v61, 0
    v_mov_b32 v62, 0
    v_mov_b32 v63, 0
    v_lshlrev_b32 v59, 4, v0
    s_lshl_b32 s18, s2, 12
    s_add_u32 s18, s18, {GX_OFF}
    s_cmp_eq_u32 s2, 2
    s_cselect_b32 s18, {CK_OFF}, s18
    buffer_store_dwordx4 v[60:63], v59, s[12:15], s18 offen
L_kln1_noz:
    s_waitcnt vmcnt(0)""")
    gen2.ln1_role(a, "")
    a("L_kln1_done:\n    s_endpgm")

def ln2_core(a, ntok, XR, SR, H, Lr, sel_hi=None):
    pass

def tail(a):
    LN_L = 256; H_L = 2816
    header(a, "tail_kernel")
    a("""    s_cmp_ge_u32 s2, 256
    s_cbranch_scc1 L_t_done""")
    if STAMP: a("    s_memrealtime s[80:81]")
    a("""    s_load_dwordx2 s[4:5], s[0:1], 0        ; A_u
    s_load_dwordx4 s[36:39], s[0:1], 80     ; w_r, w_gate
    s_load_dwordx4 s[48:51], s[0:1], 96
    s_load_dwordx2 s[52:53], s[0:1], 112    ; out
    s_load_dwordx2 s[6:7], s[0:1], 128      ; ws
    v_lshrrev_b32 v1, 6, v0
    v_and_b32 v2, 63, v0                    ; lane
    s_nop 0
    v_readfirstlane_b32 s3, v1
    s_and_b32 s57, s2, 7
    s_mul_i32 s57, s57, 24
    s_lshr_b32 s56, s2, 3
    s_add_u32 s56, s56, s57
    s_waitcnt lgkmcnt(0)
    s_cmp_ge_u32 s3, 2
    s_cselect_b32 s38, s48, s38
    s_cselect_b32 s39, s49, s39""")
    srd(a, 8, 4, 2621440)
    srd(a, 12, 6, WS_SIZE)
    srd(a, 40, 36, 1280)
    srd(a, 44, 52, 2621440)
    srd(a, 60, 38, 1966080)
    srd(a, 64, 50, 1966080)
    a(f"""    s_lshl_b32 s16, s2, 3
    s_lshl_b32 s17, s3, 1
    s_add_u32 s16, s16, s17                 ; t0
    s_mul_i32 s17, s16, 1280
    v_lshlrev_b32 v3, 2, v2                 ; lane*4
    s_mul_i32 s18, s2, {YBS}
    s_add_u32 s18, s18, {YB_OFF}
    s_lshl_b32 s19, s3, 2
    s_add_u32 s18, s18, s19
    s_add_u32 s19, s18, 4096
    s_add_u32 s34, s18, 8192
    v_lshlrev_b32 v4, 5, v2                 ; lane*32""")
    for t in range(2):
        for k in range(5):
            a(f"    buffer_load_dword v{6+5*t+k}, v3, s[8:11], s17 offen offset:{t*1280+256*k}")
    for k in range(5):
        for hh in range(2):
            so = ["s18", "s18", "s19", "s19", "s34"][k]
            off = (k & 1) * 2048 + 16 * hh
            a(f"    buffer_load_dword v{16+2*k+hh}, v4, s[12:15], {so} offen offset:{off}")
    for k in range(5):
        a(f"    buffer_load_dword v{26+k}, v3, s[40:43], 0 offen offset:{256*k}")
    H = [[32 + 10*t + j for j in range(10)] for t in range(2)]
    a("    s_waitcnt vmcnt(0)")
    for k in range(5):
        for hh in range(2):
            j = 2*k + hh
            a(f"    v_lshlrev_b32 v52, 16, v{16+j}")
            a(f"    v_and_b32 v53, 0xffff0000, v{16+j}")
            for t in range(2):
                if hh == 0:
                    a(f"    v_lshlrev_b32 v{H[t][j]}, 16, v{6+5*t+k}")
                else:
                    a(f"    v_and_b32 v{H[t][j]}, 0xffff0000, v{6+5*t+k}")
            a(f"    v_add_f32 v{H[0][j]}, v{H[0][j]}, v52")
            a(f"    v_add_f32 v{H[1][j]}, v{H[1][j]}, v53")
            round_bf16_pair(a, 54, H[0][j], H[1][j])
    vS = [52, 53]; vD = [54, 55]
    sM = [20, 21]; sMB = [24, 25]; sRS = [28, 29]
    stats(a, H, vS, vD, sM, sMB, sRS)
    Lr = [[56 + 10*t + j for j in range(10)] for t in range(2)]
    for j in range(10):
        k, hh = j // 2, j & 1
        a(f"    v_subrev_f32 v{Lr[0][j]}, s{sMB[0]}, v{H[0][j]}")
        a(f"    v_subrev_f32 v{Lr[1][j]}, s{sMB[1]}, v{H[1][j]}")
        round_bf16_pair(a, 54, Lr[0][j], Lr[1][j])
        a(f"    v_mul_f32 v{Lr[0][j]}, s{sRS[0]}, v{Lr[0][j]}")
        a(f"    v_mul_f32 v{Lr[1][j]}, s{sRS[1]}, v{Lr[1][j]}")
        round_bf16_pair(a, 54, Lr[0][j], Lr[1][j])
        if hh == 0:
            a(f"    v_lshlrev_b32 v55, 16, v{26+k}")
        else:
            a(f"    v_and_b32 v55, 0xffff0000, v{26+k}")
        if j == 0:
            a(f"    v_mul_f32 v52, v55, v{Lr[0][j]}")
            a(f"    v_mul_f32 v53, v55, v{Lr[1][j]}")
        else:
            a(f"    v_fmac_f32 v52, v55, v{Lr[0][j]}")
            a(f"    v_fmac_f32 v53, v55, v{Lr[1][j]}")
    dpp_reduce(a, [52, 53])
    a("""    s_nop 0
    v_cvt_pk_bf16_f32 v52, v52, v53
    s_nop 0
    v_readlane_b32 s20, v52, 63""")
    for t in range(2):
        for k in range(5):
            a(f"    v_add_f32 v54, v{H[t][2*k]}, v{Lr[t][2*k]}")
            a(f"    v_add_f32 v55, v{H[t][2*k+1]}, v{Lr[t][2*k+1]}")
            a(f"    v_cvt_pk_bf16_f32 v{6+5*t+k}, v54, v55")
    a(f"""    s_and_b32 s21, s20, 0xffff
    s_lshr_b32 s22, s20, 16
    s_xor_b32 s23, s21, 0xffff
    s_or_b32 s24, s21, 0x8000
    s_bitcmp1_b32 s21, 15
    s_cselect_b32 s21, s23, s24
    s_xor_b32 s23, s22, 0xffff
    s_or_b32 s24, s22, 0x8000
    s_bitcmp1_b32 s22, 15
    s_cselect_b32 s22, s23, s24
    s_lshl_b32 s21, s21, 16
    s_lshl_b32 s22, s22, 16
    s_sub_u32 s23, 0xffff, s16
    s_or_b32 s21, s21, s23
    s_sub_u32 s23, s23, 1
    s_or_b32 s22, s22, s23
    s_max_u32 s23, s21, s22
    v_mov_b32 v52, s23
    s_lshl_b32 s24, s3, 2
    v_mov_b32 v53, s24
    ds_write_b32 v53, v52
    v_mov_b32 v53, 0
    s_waitcnt lgkmcnt(0)
    s_barrier
    ds_read_b128 v[76:79], v53
    s_lshl_b32 s25, s2, 2
    s_add_u32 s25, s25, {CK_OFF}
    s_waitcnt lgkmcnt(0)
    v_max_u32 v76, v76, v77
    v_max_u32 v78, v78, v79
    v_max_u32 v76, v76, v78
    s_cmp_lg_u32 s3, 0
    s_cbranch_scc1 L_t_nokey
    v_cmp_eq_u32 vcc, 0, v2
    s_and_saveexec_b64 s[30:31], vcc
    buffer_store_dword v76, v53, s[12:15], s25 offen sc1
    s_mov_b64 exec, s[30:31]
L_t_nokey:
    v_readfirstlane_b32 s24, v76
    s_nop 3
    s_mov_b32 s26, 0
    s_cmp_eq_u32 s24, s21
    s_cselect_b32 s26, 1, s26
    s_cmp_eq_u32 s24, s22
    s_cselect_b32 s26, 2, s26
    s_cmp_eq_u32 s26, 1
    s_cbranch_scc1 L_t_skip0""")
    for k in range(5):
        a(f"    buffer_store_dword v{6+k}, v3, s[44:47], s17 offen offset:{256*k}")
    a("""L_t_skip0:
    s_cmp_eq_u32 s26, 2
    s_cbranch_scc1 L_t_skip1""")
    for k in range(5):
        a(f"    buffer_store_dword v{11+k}, v3, s[44:47], s17 offen offset:{1280+256*k}")
    a("L_t_skip1:")
    def wd_loads():
        for k in range(6):
            a(f"    buffer_load_dwordx4 v[{80+6*k}:{83+6*k}], v117, s[64:67], s22 offen")
            a(f"    buffer_load_dword v{84+6*k}, v117, s[64:67], s22 offen offset:16")
            if k < 5:
                a(f"    s_add_u32 s22, s22, {256*1280}")
    a("""    v_and_b32 v116, 127, v0                 ; r0
    s_cmp_ge_u32 s2, 192
    s_cbranch_scc1 L_t_wd
    s_movk_i32 s21, 3072
    v_mul_lo_u32 v117, v116, s21
    s_lshl_b32 s22, s56, 4""")
    for k in range(5):
        a(f"    buffer_load_dwordx4 v[{80+4*k}:{83+4*k}], v117, s[60:63], s22 offen")
        if k < 4:
            a(f"    s_add_u32 s22, s22, {128*3072}")
    a("""    s_branch L_t_wdone
L_t_wd:
    s_movk_i32 s21, 1280
    v_mul_lo_u32 v117, v0, s21
    s_sub_u32 s56, s2, 192
    s_and_b32 s22, s56, 7
    s_lshl_b32 s22, s22, 3
    s_lshr_b32 s56, s56, 3
    s_add_u32 s56, s56, s22
    s_mul_i32 s22, s56, 20                  ; 10 columns
    s_cmp_eq_u32 s3, 3
    s_cbranch_scc1 L_t_wdone""")
    wd_loads()
    a("L_t_wdone:")
    if STAMP: a("    s_memrealtime s[82:83]")
    a(f"""    s_cmp_lg_u32 s3, 3
    s_cbranch_scc1 L_t_wait
    v_lshlrev_b32 v120, 4, v2
    s_mov_b32 s27, {CK_OFF}
L_t_poll:
    buffer_load_dwordx4 v[76:79], v120, s[12:15], s27 offen sc1
    s_waitcnt vmcnt(0)
    v_min_u32 v121, v76, v77
    v_min_u32 v122, v78, v79
    v_min_u32 v121, v121, v122
    v_cmp_eq_u32 vcc, 0, v121
    s_nop 1
    s_cmp_eq_u64 vcc, 0
    s_cbranch_scc1 L_t_ready
    s_sleep 1
    s_branch L_t_poll
L_t_ready:
    v_max_u32 v76, v76, v77
    v_max_u32 v78, v78, v79
    v_max_u32 v76, v76, v78""")
    dpp_reduce(a, [76], op="v_max_u32")
    a(f"""    s_nop 0
    v_readlane_b32 s20, v76, 63
    s_nop 3
    s_and_b32 s21, s20, 0xffff
    s_sub_u32 s21, 0xffff, s21
    s_mul_i32 s27, s21, 1280
    s_lshr_b32 s28, s21, 3
    s_mul_i32 s28, s28, {YBS}
    s_add_u32 s28, s28, {YB_OFF}
    s_and_b32 s29, s21, 7
    s_lshl_b32 s29, s29, 1
    s_add_u32 s28, s28, s29
    s_add_u32 s29, s28, 4096
    s_add_u32 s35, s28, 8192""")
    for k in range(5):
        a(f"    buffer_load_dword v{16+k}, v3, s[8:11], s27 offen offset:{256*k}")
    for k in range(5):
        for hh in range(2):
            so = ["s28", "s28", "s29", "s29", "s35"][k]
            off = (k & 1) * 2048 + 16 * hh
            a(f"    buffer_load_ushort v{21+2*k+hh}, v4, s[12:15], {so} offen offset:{off}")
    a(f"""    v_mov_b32 v121, 16
    v_mov_b32 v122, s20
    ds_write_b32 v121, v122
    v_lshlrev_b32 v120, 3, v2
    s_waitcnt vmcnt(0)""")
    W = [120+4+j for j in range(10)]
    for k in range(5):
        a(f"    v_lshlrev_b32 v{W[2*k]}, 16, v{16+k}")
        a(f"    v_and_b32 v{W[2*k+1]}, 0xffff0000, v{16+k}")
        a(f"    v_lshlrev_b32 v{21+2*k}, 16, v{21+2*k}")
        a(f"    v_lshlrev_b32 v{22+2*k}, 16, v{22+2*k}")
        a(f"    v_add_f32 v{W[2*k]}, v{W[2*k]}, v{21+2*k}")
        a(f"    v_add_f32 v{W[2*k+1]}, v{W[2*k+1]}, v{22+2*k}")
        round_bf16_pair(a, 121, W[2*k], W[2*k+1])
        a(f"    ds_write_b64 v120, v[{W[2*k]}:{W[2*k+1]}] offset:{H_L+512*k}")
    stats(a, [W], [134], [135], [72], [73], [74])
    for k in range(5):
        a(f"    v_subrev_f32 v{W[2*k]}, s73, v{W[2*k]}")
        a(f"    v_subrev_f32 v{W[2*k+1]}, s73, v{W[2*k+1]}")
        round_bf16_pair(a, 121, W[2*k], W[2*k+1])
        a(f"    v_mul_f32 v{W[2*k]}, s74, v{W[2*k]}")
        a(f"    v_mul_f32 v{W[2*k+1]}, s74, v{W[2*k+1]}")
        round_bf16_pair(a, 121, W[2*k], W[2*k+1])
        a(f"    ds_write_b64 v120, v[{W[2*k]}:{W[2*k+1]}] offset:{LN_L+512*k}")
    a("""    s_cmp_lt_u32 s2, 192
    s_cbranch_scc1 L_t_w3done""")
    wd_loads()
    a("""L_t_w3done:
    s_waitcnt lgkmcnt(0)
L_t_wait:
    s_barrier
    v_mov_b32 v121, 16
    ds_read_b32 v76, v121
    v_lshlrev_b32 v5, 2, v116""")
    for k in range(5):
        a(f"    ds_read_b32 v{28+k}, v5 offset:{LN_L+512*k}")
    a("""    s_waitcnt lgkmcnt(5)
    v_readfirstlane_b32 s20, v76
    s_nop 3""")
    if STAMP: a("    s_memrealtime s[84:85]")
    a("""    s_and_b32 s21, s20, 0xffff
    s_sub_u32 s21, 0xffff, s21
    s_cmp_eq_u32 s26, 0
    s_cbranch_scc1 L_t_nodef
    s_cmp_eq_u32 s20, s24
    s_cbranch_scc1 L_t_nodef
    s_cmp_eq_u32 s26, 2
    s_cbranch_scc1 L_t_def1""")
    for k in range(5):
        a(f"    buffer_store_dword v{6+k}, v3, s[44:47], s17 offen offset:{256*k}")
    a("    s_branch L_t_nodef\nL_t_def1:")
    for k in range(5):
        a(f"    buffer_store_dword v{11+k}, v3, s[44:47], s17 offen offset:{1280+256*k}")
    a("""L_t_nodef:
    s_cmp_ge_u32 s2, 192
    s_cbranch_scc1 L_t_ffn2
    s_waitcnt vmcnt(5) lgkmcnt(0)""")
    for k in range(5):
        for p in range(4):
            a(f"    v_lshlrev_b32 v44, 16, v{80+4*k+p}")
            a(f"    v_and_b32 v45, 0xffff0000, v{80+4*k+p}")
            if k == 0:
                a(f"    v_mul_f32 v{36+2*p}, v{28+k}, v44")
                a(f"    v_mul_f32 v{37+2*p}, v{28+k}, v45")
            else:
                a(f"    v_fmac_f32 v{36+2*p}, v{28+k}, v44")
                a(f"    v_fmac_f32 v{37+2*p}, v{28+k}, v45")
    dpp_reduce(a, list(range(36, 44)))
    a("""    s_lshl_b32 s22, s3, 5
    s_add_u32 s22, s22, 64
    v_mov_b32 v46, s22
    v_cmp_eq_u32 vcc, 63, v2
    s_and_saveexec_b64 s[30:31], vcc
    ds_write_b128 v46, v[36:39]
    ds_write_b128 v46, v[40:43] offset:16
    s_mov_b64 exec, s[30:31]
    s_waitcnt lgkmcnt(0)
    s_barrier
    s_cmp_lg_u32 s3, 0
    s_cbranch_scc1 L_t_end
    v_and_b32 v46, 7, v2
    v_lshlrev_b32 v46, 2, v46
    ds_read_b32 v47, v46 offset:64
    ds_read_b32 v48, v46 offset:96
    ds_read_b32 v49, v46 offset:128
    ds_read_b32 v50, v46 offset:160
    s_waitcnt lgkmcnt(0)
    v_add_f32 v47, v47, v48                 ; gate
    v_add_f32 v49, v49, v50                 ; up""")
    round_bf16_pair(a, 51, 47, 49)
    a(f"""    v_mul_f32 v52, 0xbfb8aa3b, v47
    v_exp_f32 v52, v52
    s_nop 0
    v_add_f32 v52, 1.0, v52
    v_rcp_f32 v52, v52
    s_nop 0
    v_mul_f32 v47, v47, v52                 ; silu
    v_cvt_pk_bf16_f32 v47, v47, v47
    v_lshlrev_b32 v47, 16, v47
    v_mul_f32 v47, v47, v49
    v_cvt_pk_bf16_f32 v47, v47, v47
    v_and_b32 v47, 0xffff, v47
    s_nop 0""")
    for f in range(8):
        a(f"    v_readlane_b32 s{72+f}, v47, {f}")
    a(f"""    s_nop 3
    s_lshl_b32 s73, s73, 16
    s_or_b32 s72, s72, s73
    s_lshl_b32 s75, s75, 16
    s_or_b32 s74, s74, s75
    s_lshl_b32 s77, s77, 16
    s_or_b32 s76, s76, s77
    s_lshl_b32 s79, s79, 16
    s_or_b32 s78, s78, s79
    v_cmp_eq_u32 vcc, 0, v2
    v_mov_b32 v36, s76
    v_mov_b32 v37, s78
    v_mov_b32 v40, s72
    v_mov_b32 v41, s74
    v_cndmask_b32 v36, v36, v40, vcc
    v_cndmask_b32 v37, v37, v41, vcc
    v_mov_b32 v38, 1
    v_mov_b32 v39, 1
    v_lshlrev_b32 v46, 4, v2
    s_lshl_b32 s22, s56, 5
    s_add_u32 s22, s22, {GX_OFF}
    v_cmp_gt_u32 vcc, 2, v2
    s_and_saveexec_b64 s[30:31], vcc
    buffer_store_dwordx4 v[36:39], v46, s[12:15], s22 offen sc1
    s_mov_b64 exec, s[30:31]
    s_branch L_t_end""")
    a(f"""L_t_ffn2:
    v_lshrrev_b32 v118, 2, v0
    v_lshlrev_b32 v118, 4, v118
    s_mov_b32 s27, {GX_OFF}
    s_add_u32 s28, s27, 4096
    v_and_b32 v119, 2, v0
    v_cmp_ne_u32 s[32:33], 0, v119
    v_and_b32 v119, 1, v0
    v_cmp_ne_u32 s[34:35], 0, v119
    ; r, sigmoid
    s_lshr_b32 s26, s20, 16
    s_xor_b32 s23, s26, 0xffff
    s_and_b32 s29, s26, 0x7fff
    s_bitcmp1_b32 s26, 15
    s_cselect_b32 s26, s29, s23
    s_lshl_b32 s26, s26, 16                 ; r as f32
    v_mov_b32 v70, s26
    v_mul_f32 v70, 0xbfb8aa3b, v70
    v_exp_f32 v70, v70
    s_nop 0
    v_add_f32 v70, 1.0, v70
    v_rcp_f32 v70, v70
    s_nop 0
    v_cvt_pk_bf16_f32 v70, v70, v70
    v_lshlrev_b32 v70, 16, v70
    s_mul_i32 s23, s56, 10
    v_min_u32 v71, 9, v0
    v_add_u32 v71, s23, v71                 ; column
    v_lshlrev_b32 v72, 2, v71
    ds_read_b32 v73, v72 offset:{LN_L}
    ds_read_b32 v74, v72 offset:{H_L}
    v_lshlrev_b32 v71, 1, v71
    s_mul_i32 s21, s21, 1280
L_t_poll2:""")
    for k in range(6):
        so = "s27" if k < 4 else "s28"
        a(f"    buffer_load_dwordx4 v[{32+4*k}:{35+4*k}], v118, s[12:15], {so} offen offset:{1024*(k&3)} sc1")
    a("""    s_waitcnt vmcnt(0)
    v_min3_u32 v56, v34, v38, v42
    v_min3_u32 v57, v46, v50, v54
    v_min_u32 v56, v56, v57
    v_cmp_eq_u32 vcc, 0, v56
    s_nop 1
    s_cmp_eq_u64 vcc, 0
    s_cbranch_scc1 L_t_ready2
    s_sleep 1
    s_branch L_t_poll2
L_t_ready2:""")
    if STAMP: a("    s_memrealtime s[86:87]")
    for k in range(6):
        b = 32 + 4*k
        a(f"""    v_cndmask_b32 v{b}, v{b}, v{b+1}, s[32:33]
    v_lshlrev_b32 v{b+1}, 16, v{b}
    v_and_b32 v{b}, 0xffff0000, v{b}
    v_cndmask_b32 v{b}, v{b+1}, v{b}, s[34:35]""")
    for k in range(6):
        for p in range(5):
            a(f"    v_lshlrev_b32 v68, 16, v{80+6*k+p}")
            a(f"    v_and_b32 v69, 0xffff0000, v{80+6*k+p}")
            if k == 0:
                a(f"    v_mul_f32 v{56+2*p}, v{32+4*k}, v68")
                a(f"    v_mul_f32 v{57+2*p}, v{32+4*k}, v69")
            else:
                a(f"    v_fmac_f32 v{56+2*p}, v{32+4*k}, v68")
                a(f"    v_fmac_f32 v{57+2*p}, v{32+4*k}, v69")
    dpp_reduce(a, list(range(56, 66)))
    a("""    s_mul_i32 s22, s3, 48
    s_add_u32 s22, s22, 64
    v_mov_b32 v46, s22
    v_cmp_eq_u32 vcc, 63, v2
    s_and_saveexec_b64 s[30:31], vcc
    ds_write_b128 v46, v[56:59]
    ds_write_b128 v46, v[60:63] offset:16
    ds_write_b64 v46, v[64:65] offset:32
    s_mov_b64 exec, s[30:31]
    s_waitcnt lgkmcnt(0)
    s_barrier
    v_cmp_gt_u32 vcc, 10, v0
    s_and_saveexec_b64 s[30:31], vcc
    s_cbranch_execz L_t_end
    v_lshlrev_b32 v46, 2, v0
    ds_read_b32 v47, v46 offset:64
    ds_read_b32 v48, v46 offset:112
    ds_read_b32 v49, v46 offset:160
    ds_read_b32 v50, v46 offset:208
    s_waitcnt lgkmcnt(0)
    v_add_f32 v47, v47, v48
    v_add_f32 v49, v49, v50
    v_add_f32 v47, v47, v49                 ; y
    v_cvt_pk_bf16_f32 v47, v47, v47
    v_lshlrev_b32 v47, 16, v47
    v_mul_f32 v47, v47, v70
    v_cvt_pk_bf16_f32 v47, v47, v47
    v_lshlrev_b32 v47, 16, v47              ; y2
    v_add_f32 v47, v47, v73
    v_cvt_pk_bf16_f32 v47, v47, v47
    v_lshlrev_b32 v47, 16, v47
    v_add_f32 v47, v47, v74
    v_cvt_pk_bf16_f32 v47, v47, v47
    buffer_store_short v47, v71, s[44:47], s21 offen
L_t_end:
    s_mov_b64 exec, -1""")
    if STAMP:
        a(f"""    s_memrealtime s[88:89]
    s_waitcnt lgkmcnt(0)
    v_mov_b32 v60, s80
    v_mov_b32 v61, s82
    v_mov_b32 v62, s84
    v_mov_b32 v63, s86
    v_mov_b32 v64, s88
    s_lshl_b32 s23, s2, 7
    s_lshl_b32 s22, s3, 5
    s_add_u32 s23, s23, s22
    s_add_u32 s23, s23, {ST_OFF+0x40000}
    v_mov_b32 v12, 0
    buffer_store_dwordx4 v[60:63], v12, s[12:15], s23 offen
    buffer_store_dword v64, v12, s[12:15], s23 offen offset:16""")
    a("""L_t_done:
    s_endpgm""")

def gen():
    a = Asm()
    a(f"; @launch kernel=ln1_kernel grid=(256,1,1) block=(256,1,1) lds=10240")
    a(f"; @launch kernel=main1_kernel grid=(640,1,1) block=(256,1,1) lds={LDS1}")
    a("; @launch kernel=tail_kernel grid=(256,1,1) block=(256,1,1) lds=5376")
    a('.amdgcn_target "amdgcn-amd-amdhsa--gfx950"\n.text')
    kln1(a); main1(a); tail(a)
    a('.section .rodata,"a"')
    a(desc("ln1_kernel", 64))
    a(desc("main1_kernel", 152))
    a(desc("tail_kernel", 136))
    return a.text()

if __name__ == "__main__":
    out = sys.argv[1] if len(sys.argv) > 1 else "sequential_preLN__ssm_conv_s4__moe_arch_mod__prompt.s"
    open(out, "w").write(gen())
    print("wrote", out)
```

```python
import sys, os
from gen import (Asm, header, desc, srd, dpp_reduce, round_bf16_pair, stats, INV640, EPS, LOG2E, INV2PI,
                 k3, k4, k5, YB_OFF, YBS, CK_OFF, CH_OFF, GU_OFF, WS_SIZE, ST_OFF)
import gen2
from gen2 import UB_OFF, UBS
STAMP = bool(os.environ.get("STAMP"))
gen2.LX = 0

G2_OFF = 0x1000000
W2_OFF = 0x1400000
KRB = 33792
PART = 38400
EW = PART + 12288
KT = EW + 64
LDS1 = KT + 1536

def main1(a):
    header(a, "main1_kernel")
    a("""    s_cmp_ge_u32 s2, 640
    s_cbranch_scc1 L_m1_done
    s_and_b32 s16, s2, 7
    s_mul_i32 s16, s16, 80
    s_lshr_b32 s2, s2, 3
    s_add_u32 s2, s2, s16""")
    if STAMP: a("    s_memrealtime s[80:81]")
    PRIO = os.environ.get("PRIO", "")
    if PRIO: a("    s_setprio 3")
    a(f"""    s_load_dwordx4 s[48:51], s[0:1], 8
    s_load_dwordx4 s[52:55], s[0:1], 24
    s_load_dwordx4 s[56:59], s[0:1], 40
    s_load_dwordx4 s[60:63], s[0:1], 56
    s_load_dwordx2 s[66:67], s[0:1], 128    ; ws
    s_load_dwordx4 s[72:75], s[0:1], 88
    s_load_dwordx2 s[76:77], s[0:1], 104    ; w_down
    v_lshrrev_b32 v1, 6, v0
    v_and_b32 v2, 63, v0                    ; lane
    s_nop 0
    v_readfirstlane_b32 s3, v1
    v_min_u32 v3, 47, v2
    s_mul_i32 s20, s2, 384
    s_mul_i32 s21, s3, 96
    s_add_u32 s20, s20, s21
    v_lshlrev_b32 v3, 1, v3
    v_add_u32 v3, s20, v3
    s_lshl_b32 s21, s2, 1
    v_mov_b32 v4, s21
    s_and_b32 s22, s21, 0xfffffffc
    v_subrev_u32 v5, 1, v0                  ; m = tid-1
    s_mov_b32 s32, {UBS}
    v_mul_lo_u32 v5, v5, s32
    s_lshl_b32 s32, s2, 4
    v_add_u32 v5, s32, v5
    v_add_u32 v6, {UBS}, v5
    s_waitcnt lgkmcnt(0)
    global_load_ushort v20, v3, s[48:49]
    global_load_ushort v21, v3, s[50:51]
    global_load_ushort v22, v3, s[52:53]
    global_load_ushort v23, v3, s[54:55]
    global_load_ushort v24, v3, s[56:57]
    global_load_ushort v25, v3, s[58:59]
    global_load_ushort v26, v4, s[60:61]
    s_mov_b32 s24, s66
    s_mov_b32 s25, s67
    s_add_u32 s24, s24, {UB_OFF}
    s_addc_u32 s25, s25, 0
    s_mov_b32 s26, {257*UBS}
    s_mov_b32 s27, 0x00020000
    s_load_dword s68, s[62:63], s22""")
    srd(a, 12, 66, WS_SIZE)
    a("""    v_and_b32 v12, 15, v2                   ; rho
    v_lshrrev_b32 v13, 4, v2                ; g
    v_cvt_f32_u32 v14, v12
    s_mul_i32 s30, s3, 5120
    v_and_b32 v15, 7, v2
    v_mul_u32_u24 v16, 240, v15
    v_add_u32 v17, 240, v16
    v_add_u32 v18, 304, v16
    v_cmp_lt_u32 vcc, 2, v15
    v_mov_b32 v19, 256
    v_lshrrev_b32 v27, 3, v2                ; lane>>3
    v_cndmask_b32 v17, v17, v18, vcc
    v_cmp_eq_u32 vcc, 0, v15
    v_lshlrev_b32 v27, 4, v27
    v_add_u32 v27, s30, v27
    v_cndmask_b32 v17, v17, v19, vcc
    v_cvt_f32_u32 v15, v17                  ; lG
    v_lshrrev_b32 v28, 3, v2
    v_mul_u32_u24 v28, 80, v28
    v_and_b32 v29, 7, v2
    v_lshl_add_u32 v28, v29, 3, v28
    v_add_u32 v28, s30, v28
    v_lshlrev_b32 v29, 4, v2
    v_add_u32 v29, s30, v29
    v_lshlrev_b32 v30, 6, v13
    v_add_u32 v30, s30, v30
    v_lshrrev_b32 v16, 2, v12
    v_subrev_u32 v16, 1, v16
    v_max_i32 v16, 0, v16
    v_lshrrev_b32 v17, 1, v12
    v_add_u32 v17, 3, v17
    v_min_u32 v17, 7, v17
    v_mul_u32_u24 v18, 320, v13
    v_add_u32 v18, s30, v18
    v_lshl_add_u32 v31, v16, 3, v18         ; G1 addr
    v_lshl_add_u32 v16, v17, 3, v18         ; G2 addr
    v_cmp_gt_u32 s[36:37], 8, v12
    s_waitcnt vmcnt(0) lgkmcnt(0)""")
    if STAMP: a("    s_memrealtime s[92:93]")
    a("""    v_lshlrev_b32 v20, 16, v20
    v_lshlrev_b32 v21, 16, v21
    v_lshlrev_b32 v22, 16, v22
    v_lshlrev_b32 v23, 16, v23
    v_lshlrev_b32 v24, 16, v24
    v_lshlrev_b32 v25, 16, v25
    v_lshlrev_b32 v26, 16, v26""")
    a(f"""    v_mul_f32 v26, {LOG2E}, v26
    v_exp_f32 v26, v26
    s_nop 0
    v_cvt_pk_bf16_f32 v26, v26, v26
    v_lshlrev_b32 v26, 16, v26
    v_mul_f32 v32, v26, v20                 ; ar
    v_mul_f32 v33, v26, v21                 ; ai
    v_mul_f32 v32, {LOG2E}, v32             ; ar2
    v_mul_f32 v33, {INV2PI}, v33            ; ai2
    v_mul_f32 v22, v26, v22                 ; dBr
    v_mul_f32 v23, v26, v23                 ; dBi
    v_rndne_f32 v20, v33
    v_mul_f32 v34, v25, v23                 ; Ci*dBi
    v_mul_f32 v35, v25, v22                 ; Ci*dBr
    v_sub_f32 v33, v33, v20
    v_fma_f32 v34, v24, v22, -v34           ; cr
    v_fma_f32 v35, v24, v23, v35            ; ci
    ds_write_b64 v29, v[32:33]
    v_max_f32 v20, abs(v34), abs(v35)""")
    a("    s_waitcnt lgkmcnt(0)")
    for k in range(6):
        a(f"    ds_read_b64 v[{36+2*k}:{37+2*k}], v27 offset:{128*k}")
    dpp_reduce(a, [20], op="v_max_f32")
    a(f"""    s_nop 0
    v_frexp_exp_i32_f32 v20, v20
    s_nop 0
    v_readlane_b32 s23, v20, 63             ; e
    s_nop 3
    s_sub_u32 s28, 127, s23
    s_lshl_b32 s28, s28, 23                 ; 2^-e
    s_add_u32 s29, 127, s23
    s_lshl_b32 s29, s29, 23                 ; 2^e
    v_mul_f32 v34, s28, v34
    v_mul_f32 v35, s28, v35
    v_mov_b32 v20, s23
    s_lshl_b32 s31, s3, 2
    s_add_u32 s31, s31, {EW}
    v_mov_b32 v21, s31
    s_waitcnt lgkmcnt(0)
    ds_write_b64 v29, v[34:35] offset:8
    ds_write_b32 v21, v20""")
    for k in range(6):
        a(f"""    v_mul_f32 v{36+2*k}, v{36+2*k}, v15
    v_mul_f32 v{37+2*k}, v{37+2*k}, v15""")
    for k in range(6):
        a(f"""    v_exp_f32 v{36+2*k}, v{36+2*k}
    v_fract_f32 v{37+2*k}, v{37+2*k}""")
    for k in range(6):
        a(f"""    v_cos_f32 v{48+2*k}, v{37+2*k}
    v_sin_f32 v{49+2*k}, v{37+2*k}""")
    for k in range(6):
        a(f"""    v_mul_f32 v{48+2*k}, v{36+2*k}, v{48+2*k}
    v_mul_f32 v{49+2*k}, v{36+2*k}, v{49+2*k}
    ds_write_b64 v28, v[{48+2*k}:{49+2*k}] offset:{1024+640*k}""")
    for r in range(80, 92):
        a(f"    v_mov_b32 v{r}, 0")
    a("    s_waitcnt lgkmcnt(0)")
    if STAMP: a("    s_memrealtime s[90:91]\n    s_waitcnt lgkmcnt(0)")
    a("""    buffer_load_dwordx4 v[132:135], v5, s[24:27], 0 offen
    buffer_load_dwordx4 v[136:139], v6, s[24:27], 0 offen""")
    a("    s_mov_b32 s34, 0")
    if PRIO: a("    s_setprio 2")
    a("L_m1_kq:")
    for i in range(4):
        P = 32 + 8*i
        a(f"    ds_read_b128 v[{P}:{P+3}], v30 offset:{16*i}")
    for i in range(4):
        P = 32 + 8*i
        a(f"    ds_read_b64 v[{P+4}:{P+5}], v31 offset:{1024 + i*80}")
        a(f"    ds_read_b64 v[{P+6}:{P+7}], v16 offset:{1024 + i*80}")
    a("""    v_add_u32 v30, 256, v30
    v_add_u32 v31, 1280, v31
    v_add_u32 v16, 1280, v16""")
    R4 = range(4)
    T = lambda i: 92 + 10*i
    Pn = lambda i: 32 + 8*i
    for i in R4:
        a(f"    s_waitcnt lgkmcnt({11-i})")
        a(f"    v_pk_mul_f32 v[{T(i)}:{T(i)+1}], v[{Pn(i)}:{Pn(i)+1}], v[14:15] op_sel_hi:[1,0]")
    for i in R4:
        a(f"    v_exp_f32 v{T(i)}, v{T(i)}")
        a(f"    v_cos_f32 v{Pn(i)}, v{T(i)+1}")
        a(f"    v_sin_f32 v{Pn(i)+1}, v{T(i)+1}")
    for i in R4:
        a(f"    v_pk_mul_f32 v[{T(i)}:{T(i)+1}], v[{Pn(i)}:{Pn(i)+1}], v[{T(i)}:{T(i)+1}] op_sel_hi:[1,0]")
    def csq4(dst, src):
        for i in R4:
            a(f"    v_pk_mul_f32 v[{T(i)+8}:{T(i)+9}], v[{T(i)+src}:{T(i)+src+1}], v[{T(i)+src}:{T(i)+src+1}] op_sel:[1,1] op_sel_hi:[1,0] neg_lo:[0,1]")
        for i in R4:
            a(f"    v_pk_fma_f32 v[{T(i)+dst}:{T(i)+dst+1}], v[{T(i)+src}:{T(i)+src+1}], v[{T(i)+src}:{T(i)+src+1}], v[{T(i)+8}:{T(i)+9}] op_sel:[0,0,0] op_sel_hi:[0,1,1]")
    def cmul4(dstbase, x, goff, negim):
        for i in R4:
            a(f"    v_pk_mul_f32 v[{T(i)+8}:{T(i)+9}], v[{T(i)+x}:{T(i)+x+1}], v[{Pn(i)+goff}:{Pn(i)+goff+1}] op_sel:[1,1] op_sel_hi:[1,0] neg_lo:[0,1]")
        for i in R4:
            a(f"    v_pk_fma_f32 v[{T(i)+8}:{T(i)+9}], v[{T(i)+x}:{T(i)+x+1}], v[{Pn(i)+goff}:{Pn(i)+goff+1}], v[{T(i)+8}:{T(i)+9}] op_sel:[0,0,0] op_sel_hi:[0,1,1]")
        for i in R4:
            a(f"    v_cvt_pk_f16_f32 v{dstbase+i}, v{T(i)+8}, {'-' if negim else ''}v{T(i)+9}")
    for i in R4:
        a(f"    v_cvt_pk_f16_f32 v{64+i}, v{T(i)}, -v{T(i)+1}")
    csq4(2, 0); csq4(4, 2); csq4(6, 4)
    for i in R4:
        a(f"    v_cndmask_b32 v{T(i)+2}, v{T(i)+4}, v{T(i)+2}, s[36:37]")
        a(f"    v_cndmask_b32 v{T(i)+3}, v{T(i)+5}, v{T(i)+3}, s[36:37]")
    csq4(0, 6)
    a("    s_waitcnt lgkmcnt(0)")
    cmul4(68, 2, 4, True)
    cmul4(72, 6, 6, True)
    cmul4(76, 0, 2, False)
    a("    s_nop 1")
    for Tt in range(3):
        a(f"    v_mfma_f32_16x16x32_f16 v[{80+4*Tt}:{83+4*Tt}], v[{64+4*Tt}:{67+4*Tt}], v[76:79], v[{80+4*Tt}:{83+4*Tt}]")
    if PRIO:
        a("""    s_cmp_eq_u32 s34, 0
    s_cbranch_scc1 L_m1_p1
    s_setprio 0
    s_branch L_m1_p2
L_m1_p1:
    s_setprio 1
L_m1_p2:""")
    a("""    s_add_u32 s34, s34, 1
    s_cmp_lt_u32 s34, %d
    s_cbranch_scc1 L_m1_kq""" % int(os.environ.get("KQ", "3")))
    if PRIO: a(f"    s_setprio {PRIO}")
    a(f"""    s_mul_i32 s31, s3, 3072
    s_add_u32 s31, s31, {PART}
    v_lshlrev_b32 v32, 6, v12
    v_lshl_add_u32 v32, v13, 4, v32
    v_add_u32 v32, s31, v32
    v_lshlrev_b32 v33, 5, v12
    v_lshl_add_u32 v33, v13, 4, v33
    v_add_u32 v33, 1024, v33
    v_lshlrev_b32 v34, 4, v12
    v_lshl_add_u32 v34, v13, 8, v34
    v_add_u32 v34, 1024, v34
    v_cmp_gt_u32 vcc, 2, v13
    v_lshlrev_b32 v35, 3, v12
    v_lshl_add_u32 v35, v13, 8, v35
    v_add_u32 v35, 2048, v35
    v_lshlrev_b32 v36, 3, v2
    v_add_u32 v36, 2304, v36
    v_cndmask_b32 v33, v34, v33, vcc
    v_cndmask_b32 v35, v36, v35, vcc
    v_add_u32 v33, s31, v33
    v_add_u32 v35, s31, v35""")
    for r in range(80, 92):
        a(f"    v_mul_f32 v{r}, s29, v{r}")
    a(f"""    ds_write_b128 v32, v[80:83]
    ds_write_b128 v33, v[84:87]
    ds_write_b64 v35, v[88:89]
    ds_write_b64 v35, v[90:91] offset:128""")
    if STAMP: a("    s_memrealtime s[82:83]")
    a(f"""    v_lshlrev_b32 v37, 3, v0
    v_sub_u32 v37, 2047, v37                ; x0 = 2047-8tid
    v_cmp_le_u32 vcc, 240, v0""")
    for i in range(8):
        a(f"    v_subrev_u32 v{40+i}, {i}, v37")
    for i in range(8):
        a(f"    v_cvt_f32_u32 v{48+i}, v{40+i}")
    for i in range(0, 8, 2):
        a(f"    v_cvt_pk_bf16_f32 v{56+i//2}, v{48+i}, v{49+i}")
    for i in range(0, 8, 2):
        a(f"    v_and_b32 v{48+i}, 0xffff, v{56+i//2}")
        a(f"    v_lshrrev_b32 v{49+i}, 16, v{56+i//2}")
    for i in range(8):
        a(f"    v_subrev_u32 v{48+i}, 17024, v{48+i}")
    for i in range(8):
        a(f"    v_cndmask_b32 v{48+i}, v{48+i}, v{40+i}, vcc")
    for i in range(8):
        a(f"    v_lshlrev_b32 v{48+i}, 1, v{48+i}")
    D = list(range(132, 140))
    a("    s_waitcnt vmcnt(0)")
    if not os.environ.get("NOWARM"):
        a("""    ; warm the FFN weights into the memory-side cache (3072 B of each matrix per workgroup)
    v_min_u32 v7, 191, v0
    v_lshlrev_b32 v7, 4, v7
    s_mul_i32 s33, s2, 3072
    v_add_u32 v7, s33, v7
    global_load_dwordx4 v[140:143], v7, s[72:73]
    global_load_dwordx4 v[144:147], v7, s[74:75]
    global_load_dwordx4 v[148:151], v7, s[76:77]""")
    for k in range(6):
        a(f"    v_mov_b32 v{100+k}, v{D[1+k]}")
    for k in range(6):
        a(f"    v_alignbit_b32 v{108+k}, v{D[k+1]}, v{D[k]}, 16")
    for k in range(6):
        a(f"    v_alignbit_b32 v{116+k}, v{D[k+2]}, v{D[k+1]}, 16")
    a(f"""    v_mov_b32 v38, {EW}
    v_lshlrev_b32 v9, 4, v0                 ; 16*tid
    v_mov_b32 v124, 0
    v_mov_b32 v125, 0
    v_mov_b32 v126, 0
    v_mov_b32 v127, 0
    v_min_u32 v10, 8, v2
    v_mul_u32_u24 v10, 4160, v10
    v_cmp_lt_u32 vcc, 7, v2
    v_min_u32 v11, 31, v0
    v_lshlrev_b32 v11, 4, v11
    v_cndmask_b32 v10, v10, 16, vcc
    v_min_u32 v39, 191, v0
    v_lshlrev_b32 v37, 3, v39
    v_lshlrev_b32 v39, 4, v39
    s_waitcnt lgkmcnt(0)
    s_barrier
    ds_read_b128 v[60:63], v38""")
    for w in range(4):
        a(f"    ds_read_b128 v[{64+4*w}:{67+4*w}], v39 offset:{PART+3072*w}")
    a(f"""    ds_write_b128 v9, v[136:139] offset:32
    ds_write_b128 v9, v[134:137] offset:{4160*4+16}
    ds_write_b128 v9, v[100:103] offset:{4160*2+16}
    ds_write_b128 v9, v[102:105] offset:{4160*6+16}
    ds_write_b128 v9, v[108:111] offset:{4160*1+16}
    ds_write_b128 v9, v[110:113] offset:{4160*5+16}
    ds_write_b128 v9, v[116:119] offset:{4160*3+16}
    ds_write_b128 v9, v[118:121] offset:{4160*7+16}
    ds_write_b128 v11, v[124:127] offset:{KRB+4096}
    ds_write_b128 v10, v[124:127]
    s_waitcnt lgkmcnt(10)
    v_max_i32 v60, v60, v61
    v_max_i32 v62, v62, v63
    v_max_i32 v60, v60, v62
    v_max_i32 v60, -100, v60
    v_min_i32 v60, 100, v60                 ; E
    v_sub_u32 v61, 133, v60
    v_lshlrev_b32 v61, 23, v61              ; 2^(6-E)
    v_add_u32 v5, 121, v60
    v_lshlrev_b32 v5, 23, v5""")
    for i in range(4):
        a(f"    v_add_f32 v{64+i}, v{64+i}, v{68+i}")
        a(f"    v_add_f32 v{72+i}, v{72+i}, v{76+i}")
    for i in range(4):
        a(f"    v_add_f32 v{64+i}, v{64+i}, v{72+i}")
    for i in range(4):
        a(f"    v_mul_f32 v{64+i}, v61, v{64+i}")
    a(f"""    v_cvt_pk_f16_f32 v68, v64, v65
    v_cvt_pk_f16_f32 v69, v66, v67
    ds_write_b64 v37, v[68:69] offset:{KT}
    v_add_u32 v6, 1, v12
    v_and_b32 v7, 7, v6
    v_mul_u32_u24 v7, 4160, v7
    v_lshrrev_b32 v6, 3, v6
    v_add_u32 v6, v6, v13
    v_lshl_add_u32 v7, v6, 4, v7
    s_lshl_b32 s22, s3, 7
    v_add_u32 v7, s22, v7                   ; A base
    v_lshlrev_b32 v8, 5, v12
    v_lshlrev_b32 v6, 4, v13
    v_sub_u32 v8, v6, v8
    s_add_u32 s22, s22, {KRB}
    v_add_u32 v8, s22, v8                   ; B base
    s_lshl_b32 s22, s3, 13
    v_lshrrev_b32 v14, 1, v13
    v_lshl_add_u32 v14, v14, 3, v12
    v_and_b32 v14, 15, v14
    v_lshl_add_u32 v14, v13, 4, v14
    v_lshlrev_b32 v14, 4, v14
    v_add_u32 v14, s22, v14
    v_and_b32 v6, 1, v0
    v_bfe_u32 v11, v0, 1, 4
    v_lshl_add_u32 v11, v6, 3, v11
    v_and_b32 v11, 15, v11
    v_lshl_add_u32 v11, v6, 5, v11
    v_lshlrev_b32 v11, 4, v11
    v_lshrrev_b32 v6, 5, v0
    v_lshl_add_u32 v11, v6, 10, v11
    s_waitcnt lgkmcnt(0)
    s_barrier""")
    for i in range(8):
        a(f"    ds_read_u16 v{56+i}, v{48+i} offset:{KT}")
    a("    s_waitcnt lgkmcnt(0)")
    for i in range(0, 8, 2):
        a(f"    v_lshl_or_b32 v{40+i//2}, v{57+i}, 16, v{56+i}")
    a(f"    ds_write_b128 v9, v[40:43] offset:{KRB}")
    ACC = 16; AF = 48; BF = 80
    a("""    s_waitcnt lgkmcnt(0)
    s_barrier""")
    if STAMP: a("    s_memrealtime s[84:85]\n    s_waitcnt lgkmcnt(0)")
    def rdA(q, res): a(f"    ds_read_b128 v[{AF+4*q}:{AF+4*q+3}], v7 offset:{512*q+64*res}")
    def rdB(v, res): a(f"    ds_read_b128 v[{BF+4*v}:{BF+4*v+3}], v8 offset:{4064-512*v+64*res}")
    rdB(0, 0)
    for q in range(7, -1, -1): rdA(q, 0)
    for v in range(1, 8): rdB(v, 0)
    pend = ["B0"] + [f"A{q}" for q in range(7, -1, -1)] + [f"B{v}" for v in range(1, 8)]
    for res in range(2):
        for v in range(8):
            for q in range(7 - v, -1, -1):
                need = [f"B{v}", f"A{q}"]
                idx = max([pend.index(n) for n in need if n in pend], default=-1)
                if idx >= 0:
                    a(f"    s_waitcnt lgkmcnt({len(pend) - 1 - idx})")
                    pend = pend[idx+1:]
                t = q + v
                c = "0" if (res == 0 and v == 0) else f"v[{ACC+4*t}:{ACC+4*t+3}]"
                a(f"    v_mfma_f32_16x16x32_f16 v[{ACC+4*t}:{ACC+4*t+3}], v[{AF+4*q}:{AF+4*q+3}], v[{BF+4*v}:{BF+4*v+3}], {c}")
            if res == 0:
                rdB(v, 1); pend.append(f"B{v}")
                rdA(7 - v, 1); pend.append(f"A{7-v}")
    a("""    s_nop 7
    s_barrier""")
    if STAMP: a("    s_memrealtime s[86:87]")
    for t in range(8):
        a(f"    ds_write_b128 v14, v[{ACC+4*t}:{ACC+4*t+3}] offset:{1024*t}")
    a("""    s_bitcmp1_b32 s2, 0
    s_cbranch_scc1 L_m1_odd
    s_lshl_b32 s68, s68, 16
L_m1_odd:
    s_and_b32 s68, s68, 0xffff0000""")
    for i in range(4):
        a(f"    v_cvt_f32_f16 v{48+2*i}, v{136+i}")
        a(f"    v_cvt_f32_f16_sdwa v{49+2*i}, v{136+i} dst_sel:DWORD dst_unused:UNUSED_PAD src0_sel:WORD_1")
    for i in range(0, 8, 2):
        a(f"    v_pk_mul_f32 v[{48+i}:{49+i}], v[{48+i}:{49+i}], s[68:69] op_sel_hi:[1,0]")
    for i in range(0, 8, 2):
        round_bf16_pair(a, 56, 48+i, 49+i)
    a(f"""    s_mov_b32 s22, {YBS}
    v_mul_lo_u32 v12, v0, s22
    s_lshl_b32 s23, s2, 4
    s_add_u32 s23, s23, {YB_OFF}
    s_waitcnt lgkmcnt(0)
    s_barrier""")
    for w in range(4):
        for hf in range(2):
            a(f"    ds_read_b128 v[{ACC+8*w+4*hf}:{ACC+8*w+4*hf+3}], v11 offset:{8192*w+256*hf}")
    a("    s_waitcnt lgkmcnt(0)")
    for i in range(0, 8, 2):
        a(f"    v_pk_add_f32 v[{ACC+i}:{ACC+i+1}], v[{ACC+i}:{ACC+i+1}], v[{ACC+8+i}:{ACC+9+i}]")
        a(f"    v_pk_add_f32 v[{ACC+16+i}:{ACC+17+i}], v[{ACC+16+i}:{ACC+17+i}], v[{ACC+24+i}:{ACC+25+i}]")
    for i in range(0, 8, 2):
        a(f"    v_pk_add_f32 v[{ACC+i}:{ACC+i+1}], v[{ACC+i}:{ACC+i+1}], v[{ACC+16+i}:{ACC+17+i}]")
    for i in range(8):
        a(f"    v_mul_f32 v{ACC+i}, v5, v{ACC+i}")
    for i in range(0, 8, 2):
        round_bf16_pair(a, 56, ACC+i, ACC+i+1)
    for i in range(0, 8, 2):
        a(f"    v_pk_add_f32 v[{ACC+i}:{ACC+i+1}], v[{ACC+i}:{ACC+i+1}], v[{48+i}:{49+i}]")
    for i in range(0, 8, 2):
        a(f"    v_cvt_pk_bf16_f32 v{60+i//2}, v{ACC+i}, v{ACC+i+1}")
    a("    buffer_store_dwordx4 v[60:63], v12, s[12:15], s23 offen")
    if STAMP:
        a(f"""    s_memrealtime s[88:89]
    s_waitcnt lgkmcnt(0)
    v_mov_b32 v60, s80
    v_mov_b32 v61, s82
    v_mov_b32 v62, s84
    v_mov_b32 v63, s86
    v_mov_b32 v64, s88
    v_mov_b32 v65, s90
    v_mov_b32 v66, s92
    v_mov_b32 v67, 0
    s_lshl_b32 s23, s2, 7
    s_lshl_b32 s22, s3, 5
    s_add_u32 s23, s23, s22
    s_add_u32 s23, s23, {ST_OFF}
    v_mov_b32 v12, 0
    buffer_store_dwordx4 v[60:63], v12, s[12:15], s23 offen
    buffer_store_dwordx4 v[64:67], v12, s[12:15], s23 offen offset:16""")
    a("""L_m1_done:
    s_endpgm""")

def gen():
    a = Asm()
    a(f"; @launch kernel=ln1_kernel grid=(256,1,1) block=(256,1,1) lds=10240")
    a(f"; @launch kernel=main1_kernel grid=(640,1,1) block=(256,1,1) lds={LDS1}")
    a("; @launch kernel=ln2_kernel grid=(256,1,1) block=(256,1,1) lds=64")
    a("; @launch kernel=ffn1_kernel grid=(192,1,1) block=(256,1,1) lds=256")
    a("; @launch kernel=ffn2_kernel grid=(80,1,1) block=(256,1,1) lds=256")
    a('.amdgcn_target "amdgcn-amd-amdhsa--gfx950"\n.text')
    gen2.kln1(a); main1(a); k3(a); k4(a); k5(a)
    a('.section .rodata,"a"')
    a(desc("ln1_kernel", 64))
    a(desc("main1_kernel", 140))
    a(desc("ln2_kernel", 80))
    a(desc("ffn1_kernel", 64))
    a(desc("ffn2_kernel", 64))
    return a.text()

if __name__ == "__main__":
    out = sys.argv[1] if len(sys.argv) > 1 else "sequential_preLN__ssm_conv_s4__moe_arch_mod__prompt.s"
    open(out, "w").write(gen())
    print("wrote", out)
```

```python
from gen import dpp_reduce, INV640, EPS

def consts(a, sC):
    a(f"    s_mov_b32 s{sC}, {INV640}\n    s_mov_b32 s{sC+2}, {EPS}")

def rnd_pair(a, p, x):
    a(f"""    v_cvt_pk_bf16_f32 v{p}, v{x}, v{x+1}
    v_lshlrev_b32 v{x}, 16, v{p}
    v_and_b32 v{x+1}, 0xffff0000, v{p}""")

def stats_pk(a, XP, vS, vD, sM, sMB, sRS, sC):
    pr = lambda r: f"v[{r}:{r+1}]"
    a(f"    v_pk_add_f32 {pr(vS)}, {pr(XP[0])}, {pr(XP[1])}")
    a(f"    v_pk_add_f32 {pr(vD)}, {pr(XP[2])}, {pr(XP[3])}")
    for j in range(4, 10, 2):
        a(f"    v_pk_add_f32 {pr(vS)}, {pr(vS)}, {pr(XP[j])}")
        a(f"    v_pk_add_f32 {pr(vD)}, {pr(vD)}, {pr(XP[j+1])}")
    a(f"    v_pk_add_f32 {pr(vS)}, {pr(vS)}, {pr(vD)}")
    dpp_reduce(a, [vS, vS+1])
    a(f"""    s_nop 0
    v_pk_mul_f32 {pr(vS)}, {pr(vS)}, s[{sC}:{sC+1}] op_sel_hi:[1,0]
    s_nop 0
    v_readlane_b32 s{sM}, v{vS}, 63
    v_readlane_b32 s{sM+1}, v{vS+1}, 63
    v_cvt_pk_bf16_f32 v{vD}, v{vS}, v{vS+1}
    v_lshlrev_b32 v{vS}, 16, v{vD}
    v_and_b32 v{vS+1}, 0xffff0000, v{vD}
    s_nop 0
    v_readlane_b32 s{sMB}, v{vS}, 63
    v_readlane_b32 s{sMB+1}, v{vS+1}, 63""")
    for j in range(10):
        a(f"    v_pk_add_f32 {pr(vD)}, {pr(XP[j])}, s[{sM}:{sM+1}] neg_lo:[0,1] neg_hi:[0,1]")
        if j == 0:
            a(f"    v_pk_mul_f32 {pr(vS)}, {pr(vD)}, {pr(vD)}")
        else:
            a(f"    v_pk_fma_f32 {pr(vS)}, {pr(vD)}, {pr(vD)}, {pr(vS)}")
    dpp_reduce(a, [vS, vS+1])
    a(f"""    s_nop 0
    v_pk_mul_f32 {pr(vS)}, {pr(vS)}, s[{sC}:{sC+1}] op_sel_hi:[1,0]""")
    rnd_pair(a, vD, vS)
    a(f"    v_pk_add_f32 {pr(vS)}, {pr(vS)}, s[{sC+2}:{sC+3}] op_sel_hi:[1,0]")
    rnd_pair(a, vD, vS)
    a(f"""    v_sqrt_f32 v{vS}, v{vS}
    v_sqrt_f32 v{vS+1}, v{vS+1}
    s_nop 0""")
    rnd_pair(a, vD, vS)
    a(f"""    v_rcp_f32 v{vS}, v{vS}
    v_rcp_f32 v{vS+1}, v{vS+1}
    s_nop 0
    v_readlane_b32 s{sRS}, v{vS}, 63
    v_readlane_b32 s{sRS+1}, v{vS+1}, 63
    s_nop 1""")

def norm_pk(a, dst, x, p, sMB, sRS):
    pr = lambda r: f"v[{r}:{r+1}]"
    a(f"    v_pk_add_f32 {pr(dst)}, {pr(x)}, s[{sMB}:{sMB+1}] neg_lo:[0,1] neg_hi:[0,1]")
    rnd_pair(a, p, dst)
    a(f"    v_pk_mul_f32 {pr(dst)}, {pr(dst)}, s[{sRS}:{sRS+1}]")
    rnd_pair(a, p, dst)
```

```python
import sys, os
from gen import (Asm, header, desc, srd, dpp_reduce, round_bf16_pair, stats, INV640, EPS, LOG2E, INV2PI,
                 YB_OFF, YBS, CK_OFF, CH_OFF, GU_OFF, WS_SIZE, ST_OFF)
import gen2, gen4
import lnpk
from gen4 import main1, LDS1, G2_OFF, W2_OFF
STAMP = bool(os.environ.get("STAMP"))
GX_OFF = 0xD10000
gen2.LX = 0

def kln1(a):
    header(a, "ln1_kernel")
    a("""    s_cmp_ge_u32 s2, 256
    s_cbranch_scc1 L_kln1_done
    s_load_dwordx2 s[4:5], s[0:1], 0        ; A_u
    s_load_dwordx2 s[6:7], s[0:1], 128      ; ws
    v_lshrrev_b32 v1, 6, v0
    v_and_b32 v2, 63, v0                    ; lane
    s_nop 0
    v_readfirstlane_b32 s3, v1
    s_waitcnt lgkmcnt(0)""")
    srd(a, 8, 4, 2621440)
    srd(a, 12, 6, WS_SIZE)
    a("""    s_lshl_b32 s16, s2, 3
    s_lshl_b32 s17, s3, 1
    s_add_u32 s16, s16, s17                 ; t0
    s_mul_i32 s17, s16, 1280
    v_lshlrev_b32 v3, 2, v2""")
    for t in range(2):
        for k in range(5):
            a(f"    buffer_load_dword v{6+5*t+k}, v3, s[8:11], s17 offen offset:{t*1280+256*k}")
    a(f"""    s_cmp_ge_u32 s2, 3
    s_cbranch_scc1 L_kln1_noz
    v_mov_b32 v60, 0
    v_mov_b32 v61, 0
    v_mov_b32 v62, 0
    v_mov_b32 v63, 0
    v_lshlrev_b32 v59, 4, v0
    s_lshl_b32 s18, s2, 12
    s_add_u32 s18, s18, {GX_OFF}
    s_cmp_eq_u32 s2, 2
    s_cselect_b32 s18, {CK_OFF}, s18
    buffer_store_dwordx4 v[60:63], v59, s[12:15], s18 offen
L_kln1_noz:
    s_waitcnt vmcnt(0)""")
    ln1_role_pk(a)
    a("L_kln1_done:\n    s_endpgm")

def ln1_role_pk(a):
    XP = [32 + 2*j for j in range(10)]
    lnpk.consts(a, 48)
    for k in range(5):
        a(f"    v_lshlrev_b32 v{XP[2*k]}, 16, v{6+k}")
        a(f"    v_lshlrev_b32 v{XP[2*k]+1}, 16, v{11+k}")
        a(f"    v_and_b32 v{XP[2*k+1]}, 0xffff0000, v{6+k}")
        a(f"    v_and_b32 v{XP[2*k+1]+1}, 0xffff0000, v{11+k}")
    lnpk.stats_pk(a, XP, 52, 54, 40, 42, 44, 48)
    a(f"""    v_lshlrev_b32 v56, 5, v2                ; lane*32
    s_lshl_b32 s46, s3, 2
    v_add_u32 v56, s46, v56""")
    for j in range(10):
        k, hh = j // 2, j & 1
        lnpk.norm_pk(a, XP[j], XP[j], 54, 42, 44)
        a(f"    v_cvt_pk_f16_f32 v{XP[j]}, v{XP[j]}, v{XP[j]+1}")
        a(f"    ds_write_b32 v56, v{XP[j]} offset:{2048*k+16*hh}")
    a(f"""    v_lshlrev_b32 v57, 4, v0                ; tid*16
    s_mul_i32 s46, s2, {gen2.UBS}
    s_add_u32 s46, s46, {gen2.UB_OFF}
    s_add_u32 s47, s46, 8192
    s_add_u32 s39, s46, 4096
    s_waitcnt lgkmcnt(0)
    s_barrier
    ds_read_b128 v[32:35], v57
    ds_read_b128 v[36:39], v57 offset:4096
    s_cmp_ge_u32 s3, 2
    s_cbranch_scc1 L_ln1_skip3
    ds_read_b128 v[40:43], v57 offset:8192
    s_waitcnt lgkmcnt(0)
    buffer_store_dwordx4 v[40:43], v57, s[12:15], s47 offen
L_ln1_skip3:
    s_waitcnt lgkmcnt(0)
    buffer_store_dwordx4 v[32:35], v57, s[12:15], s46 offen
    buffer_store_dwordx4 v[36:39], v57, s[12:15], s39 offen""")

def ln2_core(a, ntok, XR, SR, H, Lr, sel_hi=None):
    pass

def tail(a):
    LN_L = 256; H_L = 2816
    header(a, "tail_kernel")
    a("""    s_cmp_ge_u32 s2, 256
    s_cbranch_scc1 L_t_done""")
    if STAMP: a("    s_memrealtime s[80:81]")
    a("""    s_load_dwordx2 s[4:5], s[0:1], 0        ; A_u
    s_load_dwordx4 s[36:39], s[0:1], 80     ; w_r, w_gate
    s_load_dwordx4 s[48:51], s[0:1], 96
    s_load_dwordx2 s[52:53], s[0:1], 112    ; out
    s_load_dwordx2 s[6:7], s[0:1], 128      ; ws
    v_lshrrev_b32 v1, 6, v0
    v_and_b32 v2, 63, v0                    ; lane
    s_nop 0
    v_readfirstlane_b32 s3, v1
    s_and_b32 s57, s2, 7
    s_mul_i32 s57, s57, 24
    s_lshr_b32 s56, s2, 3
    s_add_u32 s56, s56, s57
    s_waitcnt lgkmcnt(0)
    s_cmp_ge_u32 s3, 2
    s_cselect_b32 s38, s48, s38
    s_cselect_b32 s39, s49, s39""")
    srd(a, 8, 4, 2621440)
    srd(a, 12, 6, WS_SIZE)
    srd(a, 40, 36, 1280)
    srd(a, 44, 52, 2621440)
    srd(a, 60, 38, 1966080)
    srd(a, 64, 50, 1966080)
    a(f"""    s_lshl_b32 s16, s2, 3
    s_lshl_b32 s17, s3, 1
    s_add_u32 s16, s16, s17                 ; t0
    s_mul_i32 s17, s16, 1280
    v_lshlrev_b32 v3, 2, v2                 ; lane*4
    s_mul_i32 s18, s2, {YBS}
    s_add_u32 s18, s18, {YB_OFF}
    s_lshl_b32 s19, s3, 2
    s_add_u32 s18, s18, s19
    s_add_u32 s19, s18, 4096
    s_add_u32 s34, s18, 8192
    v_lshlrev_b32 v4, 5, v2                 ; lane*32""")
    for t in range(2):
        for k in range(5):
            a(f"    buffer_load_dword v{6+5*t+k}, v3, s[8:11], s17 offen offset:{t*1280+256*k}")
    for k in range(5):
        for hh in range(2):
            so = ["s18", "s18", "s19", "s19", "s34"][k]
            off = (k & 1) * 2048 + 16 * hh
            a(f"    buffer_load_dword v{16+2*k+hh}, v4, s[12:15], {so} offen offset:{off}")
    for k in range(5):
        a(f"    buffer_load_dword v{26+k}, v3, s[40:43], 0 offen offset:{256*k}")
    HP = [32 + 2*j for j in range(10)]
    LP = [56 + 2*j for j in range(10)]
    lnpk.consts(a, 68)
    a("    s_waitcnt vmcnt(0)")
    for k in range(5):
        for hh in range(2):
            j = 2*k + hh
            a(f"    v_lshlrev_b32 v52, 16, v{16+j}")
            a(f"    v_and_b32 v53, 0xffff0000, v{16+j}")
            for t in range(2):
                if hh == 0:
                    a(f"    v_lshlrev_b32 v{HP[j]+t}, 16, v{6+5*t+k}")
                else:
                    a(f"    v_and_b32 v{HP[j]+t}, 0xffff0000, v{6+5*t+k}")
            a(f"    v_pk_add_f32 v[{HP[j]}:{HP[j]+1}], v[{HP[j]}:{HP[j]+1}], v[52:53]")
            lnpk.rnd_pair(a, 54, HP[j])
    lnpk.stats_pk(a, HP, 52, 54, 20, 24, 28, 68)
    for j in range(10):
        k, hh = j // 2, j & 1
        lnpk.norm_pk(a, LP[j], HP[j], 54, 24, 28)
        if hh == 0:
            a(f"    v_lshlrev_b32 v76, 16, v{26+k}")
        else:
            a(f"    v_and_b32 v76, 0xffff0000, v{26+k}")
        if j == 0:
            a(f"    v_pk_mul_f32 v[52:53], v[{LP[j]}:{LP[j]+1}], v[76:77] op_sel_hi:[1,0]")
        else:
            a(f"    v_pk_fma_f32 v[52:53], v[{LP[j]}:{LP[j]+1}], v[76:77], v[52:53] op_sel_hi:[1,0,1]")
    dpp_reduce(a, [52, 53])
    a("""    s_nop 0
    v_cvt_pk_bf16_f32 v52, v52, v53
    s_nop 0
    v_readlane_b32 s20, v52, 63""")
    for j in range(10):
        a(f"    v_pk_add_f32 v[{LP[j]}:{LP[j]+1}], v[{LP[j]}:{LP[j]+1}], v[{HP[j]}:{HP[j]+1}]")
    for t in range(2):
        for k in range(5):
            a(f"    v_cvt_pk_bf16_f32 v{6+5*t+k}, v{LP[2*k]+t}, v{LP[2*k+1]+t}")
    a(f"""    s_and_b32 s21, s20, 0xffff
    s_lshr_b32 s22, s20, 16
    s_xor_b32 s23, s21, 0xffff
    s_or_b32 s24, s21, 0x8000
    s_bitcmp1_b32 s21, 15
    s_cselect_b32 s21, s23, s24
    s_xor_b32 s23, s22, 0xffff
    s_or_b32 s24, s22, 0x8000
    s_bitcmp1_b32 s22, 15
    s_cselect_b32 s22, s23, s24
    s_lshl_b32 s21, s21, 16
    s_lshl_b32 s22, s22, 16
    s_sub_u32 s23, 0xffff, s16
    s_or_b32 s21, s21, s23
    s_sub_u32 s23, s23, 1
    s_or_b32 s22, s22, s23
    s_max_u32 s23, s21, s22
    v_mov_b32 v52, s23
    s_lshl_b32 s24, s3, 2
    v_mov_b32 v53, s24
    ds_write_b32 v53, v52
    v_mov_b32 v53, 0
    s_waitcnt lgkmcnt(0)
    s_barrier
    ds_read_b128 v[76:79], v53
    s_lshl_b32 s25, s2, 2
    s_add_u32 s25, s25, {CK_OFF}
    s_waitcnt lgkmcnt(0)
    v_max_u32 v76, v76, v77
    v_max_u32 v78, v78, v79
    v_max_u32 v76, v76, v78
    s_cmp_lg_u32 s3, 0
    s_cbranch_scc1 L_t_nokey
    v_cmp_eq_u32 vcc, 0, v2
    s_and_saveexec_b64 s[30:31], vcc
    buffer_store_dword v76, v53, s[12:15], s25 offen sc1
    s_mov_b64 exec, s[30:31]
L_t_nokey:
    v_readfirstlane_b32 s24, v76
    s_nop 3
    s_mov_b32 s26, 0
    s_cmp_eq_u32 s24, s21
    s_cselect_b32 s26, 1, s26
    s_cmp_eq_u32 s24, s22
    s_cselect_b32 s26, 2, s26
    s_cmp_eq_u32 s26, 1
    s_cbranch_scc1 L_t_skip0""")
    for k in range(5):
        a(f"    buffer_store_dword v{6+k}, v3, s[44:47], s17 offen offset:{256*k}")
    a("""L_t_skip0:
    s_cmp_eq_u32 s26, 2
    s_cbranch_scc1 L_t_skip1""")
    for k in range(5):
        a(f"    buffer_store_dword v{11+k}, v3, s[44:47], s17 offen offset:{1280+256*k}")
    a("L_t_skip1:")
    def wd_loads():
        for k in range(6):
            a(f"    buffer_load_dwordx4 v[{80+6*k}:{83+6*k}], v117, s[64:67], s22 offen")
            a(f"    buffer_load_dword v{84+6*k}, v117, s[64:67], s22 offen offset:16")
            if k < 5:
                a(f"    s_add_u32 s22, s22, {256*1280}")
    a("""    v_and_b32 v116, 127, v0                 ; r0
    s_cmp_ge_u32 s2, 192
    s_cbranch_scc1 L_t_wd
    s_movk_i32 s21, 3072
    v_mul_lo_u32 v117, v116, s21
    s_lshl_b32 s22, s56, 4""")
    for k in range(5):
        a(f"    buffer_load_dwordx4 v[{80+4*k}:{83+4*k}], v117, s[60:63], s22 offen")
        if k < 4:
            a(f"    s_add_u32 s22, s22, {128*3072}")
    a("""    s_branch L_t_wdone
L_t_wd:
    s_movk_i32 s21, 1280
    v_mul_lo_u32 v117, v0, s21
    s_sub_u32 s56, s2, 192
    s_and_b32 s22, s56, 7
    s_lshl_b32 s22, s22, 3
    s_lshr_b32 s56, s56, 3
    s_add_u32 s56, s56, s22
    s_mul_i32 s22, s56, 20                  ; 10 columns
    s_cmp_eq_u32 s3, 3
    s_cbranch_scc1 L_t_wdone""")
    wd_loads()
    a("L_t_wdone:")
    if STAMP: a("    s_memrealtime s[82:83]")
    a(f"""    s_cmp_lg_u32 s3, 3
    s_cbranch_scc1 L_t_wait
    v_lshlrev_b32 v120, 4, v2
    s_mov_b32 s27, {CK_OFF}
L_t_poll:
    buffer_load_dwordx4 v[76:79], v120, s[12:15], s27 offen sc1
    s_waitcnt vmcnt(0)
    v_min_u32 v121, v76, v77
    v_min_u32 v122, v78, v79
    v_min_u32 v121, v121, v122
    v_cmp_eq_u32 vcc, 0, v121
    s_nop 1
    s_cmp_eq_u64 vcc, 0
    s_cbranch_scc1 L_t_ready
    s_sleep 1
    s_branch L_t_poll
L_t_ready:
    v_max_u32 v76, v76, v77
    v_max_u32 v78, v78, v79
    v_max_u32 v76, v76, v78""")
    dpp_reduce(a, [76], op="v_max_u32")
    a(f"""    s_nop 0
    v_readlane_b32 s20, v76, 63
    s_nop 3
    s_and_b32 s21, s20, 0xffff
    s_sub_u32 s21, 0xffff, s21
    s_mul_i32 s27, s21, 1280
    s_lshr_b32 s28, s21, 3
    s_mul_i32 s28, s28, {YBS}
    s_add_u32 s28, s28, {YB_OFF}
    s_and_b32 s29, s21, 7
    s_lshl_b32 s29, s29, 1
    s_add_u32 s28, s28, s29
    s_add_u32 s29, s28, 4096
    s_add_u32 s35, s28, 8192""")
    for k in range(5):
        a(f"    buffer_load_dword v{16+k}, v3, s[8:11], s27 offen offset:{256*k}")
    for k in range(5):
        for hh in range(2):
            so = ["s28", "s28", "s29", "s29", "s35"][k]
            off = (k & 1) * 2048 + 16 * hh
            a(f"    buffer_load_ushort v{21+2*k+hh}, v4, s[12:15], {so} offen offset:{off}")
    a(f"""    v_mov_b32 v121, 16
    v_mov_b32 v122, s20
    ds_write_b32 v121, v122
    v_lshlrev_b32 v120, 3, v2
    s_waitcnt vmcnt(0)""")
    W = [120+4+j for j in range(10)]
    for k in range(5):
        a(f"    v_lshlrev_b32 v{W[2*k]}, 16, v{16+k}")
        a(f"    v_and_b32 v{W[2*k+1]}, 0xffff0000, v{16+k}")
        a(f"    v_lshlrev_b32 v{21+2*k}, 16, v{21+2*k}")
        a(f"    v_lshlrev_b32 v{22+2*k}, 16, v{22+2*k}")
        a(f"    v_add_f32 v{W[2*k]}, v{W[2*k]}, v{21+2*k}")
        a(f"    v_add_f32 v{W[2*k+1]}, v{W[2*k+1]}, v{22+2*k}")
        round_bf16_pair(a, 121, W[2*k], W[2*k+1])
        a(f"    ds_write_b64 v120, v[{W[2*k]}:{W[2*k+1]}] offset:{H_L+512*k}")
    stats(a, [W], [134], [135], [72], [73], [74])
    for k in range(5):
        a(f"    v_subrev_f32 v{W[2*k]}, s73, v{W[2*k]}")
        a(f"    v_subrev_f32 v{W[2*k+1]}, s73, v{W[2*k+1]}")
        round_bf16_pair(a, 121, W[2*k], W[2*k+1])
        a(f"    v_mul_f32 v{W[2*k]}, s74, v{W[2*k]}")
        a(f"    v_mul_f32 v{W[2*k+1]}, s74, v{W[2*k+1]}")
        round_bf16_pair(a, 121, W[2*k], W[2*k+1])
        a(f"    ds_write_b64 v120, v[{W[2*k]}:{W[2*k+1]}] offset:{LN_L+512*k}")
    a("""    s_cmp_lt_u32 s2, 192
    s_cbranch_scc1 L_t_w3done""")
    wd_loads()
    a("""L_t_w3done:
    s_waitcnt lgkmcnt(0)
L_t_wait:
    s_barrier
    v_mov_b32 v121, 16
    ds_read_b32 v76, v121
    v_lshlrev_b32 v5, 2, v116""")
    for k in range(5):
        a(f"    ds_read_b32 v{28+k}, v5 offset:{LN_L+512*k}")
    a("""    s_waitcnt lgkmcnt(5)
    v_readfirstlane_b32 s20, v76
    s_nop 3""")
    if STAMP: a("    s_memrealtime s[84:85]")
    a("""    s_and_b32 s21, s20, 0xffff
    s_sub_u32 s21, 0xffff, s21
    s_cmp_ge_u32 s2, 192
    s_cbranch_scc1 L_t_nw
    s_waitcnt vmcnt(0) lgkmcnt(0)
L_t_nw:
    s_cmp_eq_u32 s26, 0
    s_cbranch_scc1 L_t_nodef
    s_cmp_eq_u32 s20, s24
    s_cbranch_scc1 L_t_nodef
    s_cmp_eq_u32 s26, 2
    s_cbranch_scc1 L_t_def1""")
    for k in range(5):
        a(f"    buffer_store_dword v{6+k}, v3, s[44:47], s17 offen offset:{256*k}")
    a("    s_branch L_t_nodef\nL_t_def1:")
    for k in range(5):
        a(f"    buffer_store_dword v{11+k}, v3, s[44:47], s17 offen offset:{1280+256*k}")
    a("""L_t_nodef:
    s_cmp_ge_u32 s2, 192
    s_cbranch_scc1 L_t_ffn2""")
    for k in range(5):
        for p in range(4):
            a(f"    v_lshlrev_b32 v44, 16, v{80+4*k+p}")
            a(f"    v_and_b32 v45, 0xffff0000, v{80+4*k+p}")
            if k == 0:
                a(f"    v_mul_f32 v{36+2*p}, v{28+k}, v44")
                a(f"    v_mul_f32 v{37+2*p}, v{28+k}, v45")
            else:
                a(f"    v_fmac_f32 v{36+2*p}, v{28+k}, v44")
                a(f"    v_fmac_f32 v{37+2*p}, v{28+k}, v45")
    dpp_reduce(a, list(range(36, 44)))
    a("""    s_lshl_b32 s22, s3, 5
    s_add_u32 s22, s22, 64
    v_mov_b32 v46, s22
    v_cmp_eq_u32 vcc, 63, v2
    s_and_saveexec_b64 s[30:31], vcc
    ds_write_b128 v46, v[36:39]
    ds_write_b128 v46, v[40:43] offset:16
    s_mov_b64 exec, s[30:31]
    s_waitcnt lgkmcnt(0)
    s_barrier
    s_cmp_lg_u32 s3, 0
    s_cbranch_scc1 L_t_end
    v_and_b32 v46, 7, v2
    v_lshlrev_b32 v46, 2, v46
    ds_read_b32 v47, v46 offset:64
    ds_read_b32 v48, v46 offset:96
    ds_read_b32 v49, v46 offset:128
    ds_read_b32 v50, v46 offset:160
    s_waitcnt lgkmcnt(0)
    v_add_f32 v47, v47, v48                 ; gate
    v_add_f32 v49, v49, v50                 ; up""")
    round_bf16_pair(a, 51, 47, 49)
    a(f"""    v_mul_f32 v52, 0xbfb8aa3b, v47
    v_exp_f32 v52, v52
    s_nop 0
    v_add_f32 v52, 1.0, v52
    v_rcp_f32 v52, v52
    s_nop 0
    v_mul_f32 v47, v47, v52                 ; silu
    v_cvt_pk_bf16_f32 v47, v47, v47
    v_lshlrev_b32 v47, 16, v47
    v_mul_f32 v47, v47, v49
    v_cvt_pk_bf16_f32 v47, v47, v47
    v_and_b32 v47, 0xffff, v47
    s_nop 0""")
    for f in range(8):
        a(f"    v_readlane_b32 s{72+f}, v47, {f}")
    a(f"""    s_nop 3
    s_lshl_b32 s73, s73, 16
    s_or_b32 s72, s72, s73
    s_lshl_b32 s75, s75, 16
    s_or_b32 s74, s74, s75
    s_lshl_b32 s77, s77, 16
    s_or_b32 s76, s76, s77
    s_lshl_b32 s79, s79, 16
    s_or_b32 s78, s78, s79
    v_cmp_eq_u32 vcc, 0, v2
    v_mov_b32 v36, s76
    v_mov_b32 v37, s78
    v_mov_b32 v40, s72
    v_mov_b32 v41, s74
    v_cndmask_b32 v36, v36, v40, vcc
    v_cndmask_b32 v37, v37, v41, vcc
    v_mov_b32 v38, 1
    v_mov_b32 v39, 1
    v_lshlrev_b32 v46, 4, v2
    s_lshl_b32 s22, s56, 5
    s_add_u32 s22, s22, {GX_OFF}
    v_cmp_gt_u32 vcc, 2, v2
    s_and_saveexec_b64 s[30:31], vcc
    buffer_store_dwordx4 v[36:39], v46, s[12:15], s22 offen sc1
    s_mov_b64 exec, s[30:31]
    s_branch L_t_end""")
    a(f"""L_t_ffn2:
    v_lshrrev_b32 v118, 2, v0
    v_lshlrev_b32 v118, 4, v118
    s_mov_b32 s27, {GX_OFF}
    s_add_u32 s28, s27, 4096
    v_and_b32 v119, 2, v0
    v_cmp_ne_u32 s[32:33], 0, v119
    v_and_b32 v119, 1, v0
    v_cmp_ne_u32 s[34:35], 0, v119
    ; r, sigmoid
    s_lshr_b32 s26, s20, 16
    s_xor_b32 s23, s26, 0xffff
    s_and_b32 s29, s26, 0x7fff
    s_bitcmp1_b32 s26, 15
    s_cselect_b32 s26, s29, s23
    s_lshl_b32 s26, s26, 16                 ; r as f32
    v_mov_b32 v70, s26
    v_mul_f32 v70, 0xbfb8aa3b, v70
    v_exp_f32 v70, v70
    s_nop 0
    v_add_f32 v70, 1.0, v70
    v_rcp_f32 v70, v70
    s_nop 0
    v_cvt_pk_bf16_f32 v70, v70, v70
    v_lshlrev_b32 v70, 16, v70
    s_mul_i32 s23, s56, 10
    v_min_u32 v71, 9, v0
    v_add_u32 v71, s23, v71                 ; column
    v_lshlrev_b32 v72, 2, v71
    ds_read_b32 v73, v72 offset:{LN_L}
    ds_read_b32 v74, v72 offset:{H_L}
    v_lshlrev_b32 v71, 1, v71
    s_mul_i32 s21, s21, 1280
L_t_poll2:""")
    for k in range(6):
        so = "s27" if k < 4 else "s28"
        a(f"    buffer_load_dwordx4 v[{32+4*k}:{35+4*k}], v118, s[12:15], {so} offen offset:{1024*(k&3)} sc1")
    a("""    s_waitcnt vmcnt(0)
    v_min3_u32 v56, v34, v38, v42
    v_min3_u32 v57, v46, v50, v54
    v_min_u32 v56, v56, v57
    v_cmp_eq_u32 vcc, 0, v56
    s_nop 1
    s_cmp_eq_u64 vcc, 0
    s_cbranch_scc1 L_t_ready2
    s_sleep 1
    s_branch L_t_poll2
L_t_ready2:""")
    if STAMP: a("    s_memrealtime s[86:87]")
    for k in range(6):
        b = 32 + 4*k
        a(f"""    v_cndmask_b32 v{b}, v{b}, v{b+1}, s[32:33]
    v_lshlrev_b32 v{b+1}, 16, v{b}
    v_and_b32 v{b}, 0xffff0000, v{b}
    v_cndmask_b32 v{b}, v{b+1}, v{b}, s[34:35]""")
    for k in range(6):
        for p in range(5):
            a(f"    v_lshlrev_b32 v68, 16, v{80+6*k+p}")
            a(f"    v_and_b32 v69, 0xffff0000, v{80+6*k+p}")
            if k == 0:
                a(f"    v_mul_f32 v{56+2*p}, v{32+4*k}, v68")
                a(f"    v_mul_f32 v{57+2*p}, v{32+4*k}, v69")
            else:
                a(f"    v_fmac_f32 v{56+2*p}, v{32+4*k}, v68")
                a(f"    v_fmac_f32 v{57+2*p}, v{32+4*k}, v69")
    dpp_reduce(a, list(range(56, 66)))
    a("""    s_mul_i32 s22, s3, 48
    s_add_u32 s22, s22, 64
    v_mov_b32 v46, s22
    v_cmp_eq_u32 vcc, 63, v2
    s_and_saveexec_b64 s[30:31], vcc
    ds_write_b128 v46, v[56:59]
    ds_write_b128 v46, v[60:63] offset:16
    ds_write_b64 v46, v[64:65] offset:32
    s_mov_b64 exec, s[30:31]
    s_waitcnt lgkmcnt(0)
    s_barrier
    v_cmp_gt_u32 vcc, 10, v0
    s_and_saveexec_b64 s[30:31], vcc
    s_cbranch_execz L_t_end
    v_lshlrev_b32 v46, 2, v0
    ds_read_b32 v47, v46 offset:64
    ds_read_b32 v48, v46 offset:112
    ds_read_b32 v49, v46 offset:160
    ds_read_b32 v50, v46 offset:208
    s_waitcnt lgkmcnt(0)
    v_add_f32 v47, v47, v48
    v_add_f32 v49, v49, v50
    v_add_f32 v47, v47, v49                 ; y
    v_cvt_pk_bf16_f32 v47, v47, v47
    v_lshlrev_b32 v47, 16, v47
    v_mul_f32 v47, v47, v70
    v_cvt_pk_bf16_f32 v47, v47, v47
    v_lshlrev_b32 v47, 16, v47              ; y2
    v_add_f32 v47, v47, v73
    v_cvt_pk_bf16_f32 v47, v47, v47
    v_lshlrev_b32 v47, 16, v47
    v_add_f32 v47, v47, v74
    v_cvt_pk_bf16_f32 v47, v47, v47
    buffer_store_short v47, v71, s[44:47], s21 offen
L_t_end:
    s_mov_b64 exec, -1""")
    if STAMP:
        a(f"""    s_memrealtime s[88:89]
    s_waitcnt lgkmcnt(0)
    v_mov_b32 v60, s80
    v_mov_b32 v61, s82
    v_mov_b32 v62, s84
    v_mov_b32 v63, s86
    v_mov_b32 v64, s88
    s_lshl_b32 s23, s2, 7
    s_lshl_b32 s22, s3, 5
    s_add_u32 s23, s23, s22
    s_add_u32 s23, s23, {ST_OFF+0x40000}
    v_mov_b32 v12, 0
    buffer_store_dwordx4 v[60:63], v12, s[12:15], s23 offen
    buffer_store_dword v64, v12, s[12:15], s23 offen offset:16""")
    a("""L_t_done:
    s_endpgm""")

def gen():
    a = Asm()
    a(f"; @launch kernel=ln1_kernel grid=(256,1,1) block=(256,1,1) lds=10240")
    a(f"; @launch kernel=main1_kernel grid=(640,1,1) block=(256,1,1) lds={LDS1}")
    a("; @launch kernel=tail_kernel grid=(256,1,1) block=(256,1,1) lds=5376")
    a('.amdgcn_target "amdgcn-amd-amdhsa--gfx950"\n.text')
    kln1(a); main1(a); tail(a)
    a('.section .rodata,"a"')
    a(desc("ln1_kernel", 64))
    a(desc("main1_kernel", 152))
    a(desc("tail_kernel", 136))
    return a.text()

if __name__ == "__main__":
    out = sys.argv[1] if len(sys.argv) > 1 else "sequential_preLN__ssm_conv_s4__moe_arch_mod__prompt.s"
    open(out, "w").write(gen())
    print("wrote", out)
```
